```python
import torch

def _softmax(x, axis=-1):
    return torch.softmax(x, dim=axis)

def _gelu(x):
    return torch.nn.functional.gelu(x, approximate='tanh')

def _silu(x):
    return torch.nn.functional.silu(x)

def _sigmoid(x):
    return torch.sigmoid(x)

def _layernorm(x, axis=-1, eps=1e-05):
    m = x.mean(dim=axis, keepdim=True)
    v = x.var(dim=axis, keepdim=True, unbiased=False)
    return (x - m) / torch.sqrt(v + eps)

def _scatter_add(tgt, idx, src, axis=0):
    return tgt.clone().index_add_(axis, idx, src)

def _segment_sum(src, seg, n):
    out = torch.zeros((n,) + src.shape[1:], dtype=src.dtype)
    return out.index_add_(0, seg, src)

def _pad(x, pw):
    flat = tuple((v for pair in reversed(pw) for v in pair))
    return torch.nn.functional.pad(x, flat)
kernel_name = 'adaLN_cond__mha_block_cached__geglu_ffn__decode'

def setup_inputs():

    _w = lambda a: (lambda t: t.to(torch.bfloat16) if t.is_floating_point() else t)(torch.as_tensor(a))

    def _A_setup():
        B, Sq, D = (8, 1, 448)
        H, Sk, Dh = (16, 4096, 256)
        return {'x': _w((lambda *s: torch.randn(*s, dtype=torch.bfloat16) * 0.05)(B, Sq, D)), 'k_cache': _w((lambda *s: torch.randn(*s, dtype=torch.bfloat16) * 3.2)(B, H, Sk, Dh)), 'v_cache': _w((lambda *s: torch.randn(*s, dtype=torch.bfloat16) * 0.4)(B, H, Sk, Dh)), 'wq': _w((lambda *s: torch.randn(*s, dtype=torch.bfloat16) * 3.2)(D, H * Dh) * D ** (-0.5)), 'wo': _w((lambda *s: torch.randn(*s, dtype=torch.bfloat16) * 0.4)(H * Dh, D) * (H * Dh) ** (-0.5))}
    _A_in = _A_setup()

    def _B_setup():
        B, S, D, F = (8, 1, 448, 1792)
        return {'x': _w((lambda *s: torch.randn(*s, dtype=torch.bfloat16) * 0.05)(B, S, D)), 'w_gate': _w((lambda *s: torch.randn(*s, dtype=torch.bfloat16) * 0.05)(D, F)), 'w_up': _w((lambda *s: torch.randn(*s, dtype=torch.bfloat16) * 0.05)(D, F)), 'w_down': _w((lambda *s: torch.randn(*s, dtype=torch.bfloat16) * 0.05)(F, D))}
    _B_in = _B_setup()
    return {'A_x': _A_in['x'], 'A_k_cache': _A_in['k_cache'], 'A_v_cache': _A_in['v_cache'], 'A_wq': _A_in['wq'], 'A_wo': _A_in['wo'], 'B_x': _B_in['x'], 'B_w_gate': _B_in['w_gate'], 'B_w_up': _B_in['w_up'], 'B_w_down': _B_in['w_down'], 'c': _w((lambda *s: torch.randn(*s, dtype=torch.bfloat16) * 0.2)(8, 448) * 8.0), 'w_mod': _w((lambda *s: torch.randn(*s, dtype=torch.bfloat16) * 0.2)(448, 6 * 448) * 448 ** (-0.5) * 8.0)}

def reference(A_x, A_k_cache, A_v_cache, A_wq, A_wo, B_x, B_w_gate, B_w_up, B_w_down, c, w_mod):

    def _A_ref(x, k_cache, v_cache, wq, wo):
        B, Sq, D = x.shape
        H, Dh = (16, 256)
        q = (lambda x, *d: x.permute(*d))((x @ wq).reshape(B, Sq, H, Dh), 0, 2, 1, 3)
        scores = torch.einsum('bhqd,bhkd->bhqk', q, k_cache) * Dh ** (-0.5)
        p = _softmax(scores, axis=-1)
        o = torch.einsum('bhqk,bhkd->bhqd', p, v_cache)
        return (lambda x, *d: x.permute(*d))(o, 0, 2, 1, 3).reshape(B, Sq, H * Dh) @ wo

    def _B_ref(x, w_gate, w_up, w_down):
        return _gelu(x @ w_gate) * (x @ w_up) @ w_down
    x = A_x
    mod = (_silu(c) @ w_mod).reshape(c.shape[0], 6, 1, -1)
    sa, ca, ga, sb, cb, gb = (mod[:, 0].clone(), mod[:, 1].clone(), mod[:, 2].clone(), mod[:, 3].clone(), mod[:, 4].clone(), mod[:, 5].clone())
    h = _layernorm(x, axis=-1) * (1 + ca) + sa
    x = x + ga * _A_ref(h, A_k_cache, A_v_cache, A_wq, A_wo)
    h = _layernorm(x, axis=-1) * (1 + cb) + sb
    x = x + gb * _B_ref(h, B_w_gate, B_w_up, B_w_down)
    return x
```

```python
import re

TRANS = ("v_exp_f32", "v_log_f32", "v_rcp_f32", "v_rsq_f32", "v_sqrt_f32", "v_sin_f32", "v_cos_f32")

def regs_of(tok):
    tok = tok.strip()
    neg = tok.lstrip("-")
    m = re.fullmatch(r"(?:abs\()?([vsa])(\d+)\)?", neg)
    if m:
        return m.group(1), {int(m.group(2))}
    m = re.fullmatch(r"([vsa])\[(\d+):(\d+)\]", neg)
    if m:
        return m.group(1), set(range(int(m.group(2)), int(m.group(3)) + 1))
    if neg == "vcc":
        return "s", {"vcc"}
    if neg in ("vcc_lo", "vcc_hi"):
        return "s", {"vcc"}
    if neg == "exec":
        return "s", {"exec"}
    if neg == "m0":
        return "s", {"m0"}
    return None, set()

class Ins:
    __slots__ = ("op", "ops", "mods", "text", "vw", "vr", "sw", "sr", "cls", "label", "target", "srcc", "ws")
    def __init__(self, text):
        self.text = text
        self.label = None; self.target = None
        self.vw = set(); self.vr = set(); self.sw = set(); self.sr = set(); self.srcc = set()
        self.cls = "other"; self.ws = 1
        t = text.split(";")[0].strip()
        if t.endswith(":"):
            self.label = t[:-1]; self.cls = "label"; self.op = ""; self.ws = 0
            return
        if not t or t.startswith("."):
            self.cls = "dir"; self.op = ""; self.ws = 0
            return
        parts = t.split(None, 1)
        op = parts[0]; self.op = op
        rest = parts[1] if len(parts) > 1 else ""
        toks = []; depth = 0; cur = ""
        for ch in rest:
            if ch in "[(": depth += 1
            if ch in "])": depth -= 1
            if ch == "," and depth == 0:
                toks.append(cur.strip()); cur = ""
            else:
                cur += ch
        if cur.strip(): toks.append(cur.strip())
        mods = ""
        if toks:
            last = toks[-1].split(None, 1)
            toks[-1] = last[0]
            if len(last) > 1: mods = last[1]
        self.ops = toks; self.mods = mods
        R = [regs_of(x) for x in toks]
        def rd(i):
            if i < len(R):
                k, s = R[i]
                if k == "v": self.vr |= s
                elif k == "s": self.sr |= s
        def wr(i):
            k, s = R[i]
            if k == "v": self.vw |= s
            elif k == "s": self.sw |= s
        base = op.replace("_e32", "").replace("_e64", "").replace("_dpp", "").replace("_sdwa", "")
        if op.startswith("s_nop"):
            self.cls = "nop"; self.ws = int(toks[0], 0) + 1
        elif op.startswith("s_cbranch") or op == "s_branch":
            self.cls = "branch"; self.target = toks[0]
            if "vcc" in op: self.sr.add("vcc")
            if "exec" in op: self.sr.add("exec")
        elif op.startswith("s_"):
            self.cls = "salu"
            if op.startswith(("s_cmp", "s_bitcmp", "s_waitcnt", "s_barrier", "s_endpgm", "s_sleep", "s_setprio")):
                for i in range(len(toks)): rd(i)
            elif op.startswith(("s_load", "s_memrealtime", "s_memtime")):
                self.cls = "smem"; wr(0)
                for i in range(1, len(toks)): rd(i)
            else:
                wr(0)
                for i in range(1, len(toks)): rd(i)
                if "saveexec" in op: self.sw.add("exec"); self.sr.add("exec")
        elif op.startswith("v_mfma"):
            self.cls = "mfma"; wr(0); rd(1); rd(2); rd(3)
            k, s = R[3]
            self.srcc = set(s) if k == "v" else set()
        elif op.startswith("v_"):
            self.cls = "valu"
            if base in TRANS: self.cls = "trans"
            if base.startswith("v_dot2"): self.cls = "dot"
            if base.startswith("v_cmp"):
                wr(0)
                for i in range(1, len(toks)): rd(i)
            elif base in ("v_readlane_b32", "v_readfirstlane_b32"):
                self.cls = "readlane"; wr(0)
                for i in range(1, len(toks)): rd(i)
            elif base.startswith("v_permlane"):
                self.cls = "permlane"; wr(0); wr(1); rd(0); rd(1)
            else:
                wr(0)
                for i in range(1, len(toks)): rd(i)
                if base in ("v_fmac_f32", "v_dot2c_f32_bf16", "v_pk_fmac_f16", "v_writelane_b32"): rd(0)
                if base == "v_cndmask_b32" and len(toks) == 3: self.sr.add("vcc")
                if base in ("v_add_co_u32", "v_sub_co_u32", "v_addc_co_u32"):
                    wr(1)
            if "_dpp" in op or "row_" in mods or "quad_perm" in mods:
                if "bank_mask:0xf" not in mods or "row_mask:0xf" not in mods: rd(0)
        elif op.startswith("buffer_load") or op.startswith("global_load"):
            self.cls = "vmem_ld"
            if "lds" in mods.split():
                for i in range(len(toks)): rd(i)
            else:
                wr(0)
                for i in range(1, len(toks)): rd(i)
                if "d16" in op: rd(0)
        elif op.startswith("buffer_store") or op.startswith("global_store"):
            self.cls = "vmem_st"
            for i in range(len(toks)): rd(i)
        elif op.startswith("buffer_atomic") or op.startswith("global_atomic"):
            self.cls = "vmem_st"
            for i in range(len(toks)): rd(i)
            if "sc0" in mods: wr(0)
        elif op.startswith("ds_"):
            self.cls = "ds"
            if op.startswith(("ds_read", "ds_bpermute", "ds_swizzle", "ds_permute")) or "_rtn" in op:
                wr(0)
                for i in range(1, len(toks)): rd(i)
            else:
                for i in range(len(toks)): rd(i)
        else:
            raise ValueError("unknown op: " + text)

    @property
    def is_dpp(self):
        return self.cls in ("valu", "trans") and ("_dpp" in self.op or "row_" in self.mods or "quad_perm" in self.mods)
    @property
    def is_valu(self):
        return self.cls in ("valu", "trans", "dot", "readlane", "permlane")

def need(prod, cons):
    n = 0
    pv = prod.is_valu
    if pv and prod.vw:
        if cons.is_dpp:
            if prod.vw & cons.vr: n = max(n, 2)
        if cons.cls == "permlane" and prod.vw & cons.vr: n = max(n, 2)
        if cons.cls == "readlane" and prod.vw & cons.vr: n = max(n, 1)
        if cons.cls == "mfma" and prod.vw & cons.vr: n = max(n, 2)
        if prod.cls == "trans" and cons.cls != "trans" and (prod.vw & cons.vr): n = max(n, 1)
        if prod.cls == "dot":
            if cons.cls == "dot" and cons.op == prod.op:
                ab = set()
                for i in (1, 2):
                    k, s = regs_of(cons.ops[i])
                    if k == "v": ab |= s
                if prod.vw & ab: n = max(n, 3)
            elif (prod.vw & cons.vr) or (prod.vw & cons.vw): n = max(n, 3)
    if pv and prod.sw:
        sw = prod.sw
        if cons.is_valu and (sw & cons.sr):
            n = max(n, 2)
            if cons.cls == "readlane" and len(cons.ops) > 2:
                k, s = regs_of(cons.ops[2])
                if k == "s" and (sw & s): n = max(n, 4)
        if cons.cls in ("vmem_ld", "vmem_st") and (sw & cons.sr): n = max(n, 5)
    if prod.cls == "mfma":
        d = prod.vw
        if cons.cls == "mfma":
            ab = set()
            for i in (1, 2):
                k, s = regs_of(cons.ops[i])
                if k == "v": ab |= s
            if d & ab: n = max(n, 8)
            if d & cons.srcc:
                if cons.srcc == d: pass
                else: n = max(n, 6)
            elif d & cons.vw: n = max(n, 8)
        elif (d & cons.vr) or (d & cons.vw):
            n = max(n, 8)
        if cons.is_valu and (prod.srcc & cons.vw): n = max(n, 3)
    if prod.cls == "vmem_st" and ("x4" in prod.op or "x3" in prod.op):
        k, s = regs_of(prod.ops[0]) if prod.op.startswith("buffer") else regs_of(prod.ops[1])
        if k == "v" and (cons.vw & s) and cons.cls not in ("vmem_ld", "ds"): n = max(n, 2)
    return n

class Asm:
    def __init__(self):
        self.lines = []
        self.uid = 0
    def __call__(self, text):
        for ln in text.strip("\n").split("\n"):
            ln = ln.strip()
            if ln and not ln.startswith(";"): self.lines.append(ln)
    def label(self, name): self.lines.append(name + ":")
    def newlabel(self, stem="L"):
        self.uid += 1
        return f"{stem}_{self.uid}"
    def finalize(self, window=24):
        ins = [Ins(l) for l in self.lines]
        out = []
        for x in ins:
            if x.cls in ("label", "dir"):
                out.append(x); continue
            dist = 0; req = 0
            for p in reversed(out):
                if p.cls in ("label", "dir"): continue
                n = need(p, x)
                if n > dist: req = max(req, n - dist)
                dist += p.ws
                if dist >= 10: break
                if p.op in ("s_branch", "s_endpgm"): break
            while req > 0:
                k = min(req, 16)
                out.append(Ins(f"s_nop {k-1}")); req -= k
            out.append(x)
        lab = {p.label: i for i, p in enumerate(out) if p.cls == "label"}
        problems = []
        for i, p in enumerate(out):
            if p.cls == "branch" and p.target in lab:
                pre = [q for q in out[max(0, i - 40):i + 1] if q.cls not in ("label", "dir")]
                j = lab[p.target]
                post = [q for q in out[j:j + 40] if q.cls not in ("label", "dir")]
                seq = pre + post
                np_ = len(pre)
                for ci in range(np_, len(seq)):
                    dist = 0
                    for pi in range(ci - 1, -1, -1):
                        if pi < np_:
                            n = need(seq[pi], seq[ci])
                            if n > dist: problems.append((seq[pi].text, seq[ci].text, n, dist, p.text))
                        dist += seq[pi].ws
                        if dist >= 10: break
                    if seq[ci].op in ("s_branch", "s_endpgm"): break
        if problems:
            for pr in problems[:20]: print("HAZARD across branch:", pr)
            raise SystemExit("hazards across branches")
        return [p.text for p in out]
```

```python
from gen_consts import *

def tagcalc(a):
    a(f"s_mul_i32 s{S_T}, s{S_T}, 1664525")
    a(f"s_add_u32 s{S_T}, s{S_T}, 1013904223")

def T1(g, frag, A, D, tmp, s_cg):
    a = g.a
    ad, ml, f, fa, fb, o0, o1, va = tmp[0], tmp[1], tmp[9], tmp[10], tmp[11], tmp[12], tmp[13], tmp[0]
    assert ml % 4 == 0 or True
    a(f"v_and_b32 v{ad}, 7, v1")
    a(f"v_mul_u32_u24 v{ad}, {OROW_STRIDE}, v{ad}")
    a(f"v_lshrrev_b32 v{o0}, 4, v1")
    a(f"v_lshl_add_u32 v{ad}, v{o0}, 4, v{ad}")
    a(f"v_add_u32 v{ad}, {L_OROW}, v{ad}")
    a(f"v_mov_b32 v{o1}, {L_ML}")
    for s in range(8):
        a(f"ds_read_b128 v[{A+4*s}:{A+4*s+3}], v{ad} offset:{s*64}")
    a(f"ds_read_b128 v[{ml}:{ml+3}], v{o1}")
    a(f"ds_read_b128 v[{ml+4}:{ml+7}], v{o1} offset:16")
    a("s_waitcnt lgkmcnt(0)")
    for s in range(8):
        for c in range(4):
            cc = "0" if s == 0 else f"v[{D+4*c}:{D+4*c+3}]"
            a(f"v_mfma_f32_16x16x32_bf16 v[{D+4*c}:{D+4*c+3}], v[{A+4*s}:{A+4*s+3}], v[{frag+(s*4+c)*4}:{frag+(s*4+c)*4+3}], {cc}")
        if s == 0:
            a(f"v_max3_f32 v{f}, v{ml}, v{ml+2}, v{ml+4}")
            a(f"v_max_f32 v{f}, v{f}, v{ml+6}")
            for w in range(4):
                a(f"v_sub_f32 v{ml+2*w}, v{ml+2*w}, v{f}")
            for w in range(4):
                a(f"v_exp_f32 v{ml+2*w}, v{ml+2*w}")
            a(f"v_cndmask_b32 v{fa}, v{ml}, v{ml+4}, s[{S_M4}:{S_M4+1}]")
            a(f"v_cndmask_b32 v{fb}, v{ml+2}, v{ml+6}, s[{S_M4}:{S_M4+1}]")
    for c in range(4):
        d = D + 4 * c
        a(f"v_add_f32 v{d}, v{d}, v{d+1}")
        a(f"v_add_f32 v{d+2}, v{d+2}, v{d+3}")
    for c in range(4):
        d = D + 4 * c
        a(f"v_mul_f32 v{d}, v{d}, v{fa}")
        a(f"v_fmac_f32 v{d}, v{d+2}, v{fb}")
    for c in range(4):
        d = D + 4 * c
        a(f"v_mov_b32 v{d+1}, v{d}")
    for c in range(4):
        d = D + 4 * c
        a(f"v_permlane16_swap_b32 v{d}, v{d+1}")
    for c in range(4):
        d = D + 4 * c
        a(f"v_add_f32 v{d}, v{d}, v{d+1}")
    o0e = o0 if o0 % 2 == 0 else None
    assert o0 % 2 == 0 and o1 == o0 + 1
    a(f"v_mov_b32 v{o0}, v{D}")
    for c in range(1, 4):
        a(f"v_mov_b32_dpp v{o0}, v{D+4*c} quad_perm:[0,1,2,3] row_mask:{1<<c:#x} bank_mask:0xf")
    a(f"v_mov_b32 v{o1}, s{S_T}")
    a(f"v_lshlrev_b32 v{va}, 3, v1")
    a(f"s_mul_i32 s{S_T0}, s2, 3584")
    a(f"s_lshl_b32 s{S_T1}, s{s_cg}, 9")
    a(f"s_add_u32 s{S_T0}, s{S_T0}, s{S_T1}")
    a(f"s_add_u32 s{S_T0}, s{S_T0}, {W_Y:#x}")
    a(f"buffer_store_dwordx2 v[{o0}:{o1}], v{va}, s[{SRD_WS}:{SRD_WS+3}], s{S_T0} offen sc1")

def body(g):
    a = g.a
    W = int(g.opts.get("W", 12))
    a("s_cmp_ge_u32 s2, 256")
    a("s_cbranch_scc1 L_end")
    if g.stamps:
        for k in range(16): a(f"s_mov_b64 s[{S_STAMP+2*k}:{S_STAMP+2*k+1}], 0")
    g.stamp(0)
    a("s_load_dwordx16 s[4:19], s[0:1], 0")
    a("s_load_dwordx8 s[20:27], s[0:1], 64")
    a("s_load_dwordx4 s[28:31], s[0:1], 96")
    a("v_lshrrev_b32 v1, 6, v0")
    a("v_readfirstlane_b32 s3, v1")
    a("v_and_b32 v1, 63, v0")
    a("s_cmp_lg_u32 s3, 4")
    a("s_cbranch_scc1 L_noz")
    a("v_lshlrev_b32 v2, 2, v1")
    a("v_mov_b32 v3, 0")
    a("s_mov_b64 exec, 0xffff")
    a(f"ds_write_b32 v2, v3 offset:{L_CNT}")
    a("s_mov_b64 exec, -1")
    a.label("L_noz")
    a(f"s_mov_b32 s{S_SELLO}, 0x05040100")
    a(f"s_mov_b32 s{S_SELHI}, 0x07060302")
    a(f"s_mov_b32 s{S_M4}, 0xffff0000")
    a(f"s_mov_b32 s{S_M4+1}, 0xffff0000")
    a(f"s_lshr_b32 s{S_B}, s2, 5")
    a(f"s_lshr_b32 s{S_HD}, s2, 1")
    a(f"s_and_b32 s{S_HD}, s{S_HD}, 15")
    a("s_waitcnt lgkmcnt(0)")
    a(f"s_load_dword s{S_T}, s[{S_WS}:{S_WS+1}], {W_EPOCH}")
    g.srd(SRD_WS, S_WS, WS_SIZE)
    a("s_barrier")
    a("s_cmp_ge_u32 s3, 4")
    a("s_cbranch_scc1 L_helper")

    P0K = [112 + 4*j for j in range(8)]; P0V = [144 + 4*j for j in range(8)]
    P1K = [176 + 4*j for j in range(8)]; P1V = [208 + 4*j for j in range(8)]
    RK = [48 + 4*j for j in range(8)]; RV = [80 + 4*j for j in range(8)]
    a(f"s_mov_b32 s{S_HW}, s3")
    g.srd(SRD_A, S_K, 0x10000000)
    g.srd(SRD_B, S_V, 0x10000000)
    a(f"s_lshl_b32 s{S_OFFA}, s2, 20")
    a(f"s_lshl_b32 s{S_T0}, s3, 13")
    a(f"s_add_u32 s{S_OFFA}, s{S_OFFA}, s{S_T0}")
    a(f"s_add_u32 s{S_OFFB}, s{S_OFFA}, 4096")
    a("v_lshlrev_b32 v2, 4, v1")
    n = 0
    for (KK, VV) in ((P0K, P0V), (P1K, P1V), (RK, RV)):
        for (regs, srd) in ((KK, SRD_A), (VV, SRD_B)):
            for j in range(8):
                if n >= W: a(f"s_waitcnt vmcnt({W-1})")
                if n == W: g.stamp(11)
                if n == W + 12: g.stamp(12)
                if n == W + 24: g.stamp(13)
                so = S_OFFA if j < 4 else S_OFFB
                a(f"buffer_load_dwordx4 v[{regs[j]}:{regs[j]+3}], v2, s[{srd}:{srd+3}], s{so} offen offset:{(j%4)*1024} nt")
                n += 1
        a(f"s_add_u32 s{S_OFFA}, s{S_OFFA}, 32768")
        a(f"s_add_u32 s{S_OFFB}, s{S_OFFB}, 32768")
    g.stamp(1)
    for e in range(8): a(f"v_mov_b32 v{8+e}, 0")
    a("v_mov_b32 v16, 0")
    a(f"v_mov_b32 v17, {f2u(-1e30):#x}")
    a(f"s_mov_b32 s{S_C16}, {f2u(1.4426950408889634/16):#x}")
    if not g.opts.get("noq"): g.lds_wait(C_Q, 1, 44, 45)
    else: a("s_waitcnt lgkmcnt(0)")
    tagcalc(a)
    a("v_and_b32 v44, 31, v1")
    a("v_lshlrev_b32 v44, 4, v44")
    a(f"ds_read_b128 v[4:7], v44 offset:{L_Q}")
    a("s_waitcnt lgkmcnt(0)")
    g.stamp(2)
    a(f"s_mov_b32 s{S_CNT}, 29")
    a(f"s_mov_b32 s{S_FIRST}, 1")
    a.label("L_loop")
    g.macro(RK, RV, True, [15]*16)
    a(f"s_add_u32 s{S_OFFA}, s{S_OFFA}, 32768")
    a(f"s_add_u32 s{S_OFFB}, s{S_OFFB}, 32768")
    a(f"s_cmp_lg_u32 s{S_FIRST}, 0")
    a("s_cbranch_scc1 L_pcons")
    a.label("L_back")
    a(f"s_sub_u32 s{S_CNT}, s{S_CNT}, 1")
    a(f"s_cmp_lg_u32 s{S_CNT}, 0")
    a("s_cbranch_scc1 L_loop")
    g.stamp(4)
    g.lds_wait(C_WO, 4, 44, 45)
    a("s_cmp_ge_u32 s3, 3")
    a("s_cbranch_scc1 L_nowo")
    a("v_lshlrev_b32 v44, 4, v1")
    a(f"s_lshl_b32 s{S_T0}, s3, 15")
    a(f"s_add_u32 s{S_T0}, s{S_T0}, {L_WO}")
    a(f"v_add_u32 v44, s{S_T0}, v44")
    for i in range(32):
        a(f"ds_read_b128 v[{112+4*i}:{112+4*i+3}], v44 offset:{i*1024}")
    a.label("L_nowo")
    g.macro(RK, RV, False, [15 - i for i in range(16)])
    g.stamp(5)
    for d in range(4):
        a(f"v_cvt_pk_bf16_f32 v{28+d}, v{8+2*d}, v{8+2*d+1}")
    a("v_lshrrev_b32 v44, 5, v1")
    a(f"s_lshl_b32 s{S_T0}, s3, 1")
    a(f"v_add_u32 v44, s{S_T0}, v44")
    a(f"v_mul_u32_u24 v44, {OROW_STRIDE}, v44")
    a("v_and_b32 v45, 31, v1")
    a("v_lshl_add_u32 v44, v45, 4, v44")
    a(f"ds_write_b128 v44, v[28:31] offset:{L_OROW}")
    a("v_mov_b32 v45, v16")
    a("v_permlane16_swap_b32 v16, v45")
    a("v_add_f32 v16, v16, v45")
    a("v_mov_b32 v45, v16")
    a("v_permlane32_swap_b32 v16, v45")
    a("v_add_f32 v33, v16, v45")
    a("v_mov_b32 v32, v17")
    a(f"s_lshl_b32 s{S_T0}, s3, 3")
    a(f"s_add_u32 s{S_T0}, s{S_T0}, {L_ML}")
    a(f"v_mov_b32 v44, s{S_T0}")
    a("s_mov_b64 exec, 1")
    a("ds_write_b64 v44, v[32:33]")
    a("s_mov_b64 exec, -1")
    a("s_waitcnt lgkmcnt(0)")
    a("s_barrier")
    g.stamp(6)
    a("s_cmp_eq_u32 s3, 3")
    a("s_cbranch_scc1 L_s3")
    a(f"s_add_u32 s{S_T2}, s3, 4")
    T1(g, 112, 48, 80, [96, 100, 101, 102, 103, 104, 105, 106, 107, 108, 109, 110, 98, 99], S_T2)
    g.stamp(7)
    a(f"s_and_b32 s{S_T0}, s2, 63")
    a(f"s_cmp_ge_u32 s{S_T0}, 56")
    a("s_cbranch_scc1 L_fin")
    a("s_cmp_ge_u32 s3, 2")
    a("s_cbranch_scc1 L_s_b2")
    a(f"s_lshr_b32 s{S_T1}, s2, 6")
    a(f"s_lshl_b32 s{S_T1}, s{S_T1}, 1")
    a(f"s_add_u32 s{S_T1}, s{S_T1}, s3")
    a(f"s_mul_i32 s{S_T1}, s{S_T1}, 3584")
    a(f"s_add_u32 s{S_T1}, s{S_T1}, {W_X1:#x}")
    a("v_lshrrev_b32 v44, 3, v1")
    a("v_lshlrev_b32 v44, 9, v44")
    a("v_and_b32 v45, 7, v1")
    a("v_lshl_add_u32 v44, v45, 4, v44")
    for r in range(48, 64): a(f"v_mov_b32 v{r}, 0")
    a(f"s_mul_i32 s{S_T2}, s3, {56*32}")
    a("v_lshlrev_b32 v46, 5, v1")
    a(f"v_add_u32 v46, s{S_T2}, v46")
    a(f"s_mov_b32 exec_lo, -1")
    a(f"s_mov_b32 exec_hi, 0x00ffffff")
    a(f"ds_read_b128 v[64:67], v46 offset:{L_CB}")
    a(f"ds_read_b128 v[68:71], v46 offset:{L_CB+16}")
    a(f"ds_read_b128 v[72:75], v46 offset:{L_SB}")
    a(f"ds_read_b128 v[76:79], v46 offset:{L_SB+16}")
    g.poll([f"buffer_load_dwordx4 v[{48+4*c}:{48+4*c+3}], v44, s[{SRD_WS}:{SRD_WS+3}], s{S_T1} offen offset:{c*128} sc1" for c in range(4)],
           [49, 51, 53, 55, 57, 59, 61, 63])
    a("s_mov_b64 exec, -1")
    g.stamp(8)
    X = [48, 52, 56, 60, 50, 54, 58, 62]
    mb, ri = layernorm_list(g, X, [20, 21, 22, 23, 24, 25])
    a("s_waitcnt lgkmcnt(0)")
    for p in range(4):
        x0, x1 = X[2*p], X[2*p+1]
        a(f"v_sub_f32 v{x0}, v{x0}, v{mb}")
        a(f"v_sub_f32 v{x1}, v{x1}, v{mb}")
        g.rnd2(x0, x1, 26)
        a(f"v_mul_f32 v{x0}, v{x0}, v{ri}")
        a(f"v_mul_f32 v{x1}, v{x1}, v{ri}")
        g.rnd2(x0, x1, 26)
        a(f"v_mul_f32 v{x0}, v{x0}, v{64+2*p}")
        a(f"v_mul_f32 v{x1}, v{x1}, v{64+2*p+1}")
        g.rnd2(x0, x1, 26)
        a(f"v_add_f32 v{x0}, v{x0}, v{72+2*p}")
        a(f"v_add_f32 v{x1}, v{x1}, v{72+2*p+1}")
        a(f"v_cvt_pk_bf16_f32 v{28+p}, v{x0}, v{x1}")
    a(f"s_mul_i32 s{S_T2}, s3, {H2_STRIDE}")
    a("v_lshlrev_b32 v46, 4, v1")
    a(f"v_add_u32 v46, s{S_T2}, v46")
    a(f"s_mov_b32 exec_lo, -1")
    a(f"s_mov_b32 exec_hi, 0x00ffffff")
    a(f"ds_write_b128 v46, v[28:31] offset:{L_H2}")
    a("s_mov_b64 exec, -1")
    a("s_waitcnt lgkmcnt(0)")
    a.label("L_s_b2")
    a("s_barrier")
    a("s_barrier")
    a("s_branch L_fin")

    a.label("L_s3")
    a(f"v_mov_b32 v44, {L_ML}")
    a("ds_read_b128 v[48:51], v44")
    a("ds_read_b128 v[52:55], v44 offset:16")
    a("v_lshrrev_b32 v45, 5, v1")
    a("v_lshlrev_b32 v45, 3, v45")
    a("v_bfe_u32 v46, v1, 2, 1")
    a("v_lshl_add_u32 v45, v46, 2, v45")
    a("v_bfe_u32 v46, v1, 3, 1")
    a("v_lshl_add_u32 v45, v46, 1, v45")
    a("v_bfe_u32 v46, v1, 4, 1")
    a("v_add_u32 v45, v45, v46")
    a("v_lshlrev_b32 v46, 2, v45")
    a(f"ds_read_b32 v40, v46 offset:{L_TC}")
    a(f"ds_read_b32 v41, v46 offset:{L_TC+64}")
    a(f"ds_read_b32 v42, v46 offset:{L_TC+128}")
    a("s_waitcnt lgkmcnt(0)")
    a("v_max3_f32 v56, v48, v50, v52")
    a("v_max_f32 v56, v56, v54")
    for w in range(4): a(f"v_sub_f32 v{48+2*w}, v{48+2*w}, v56")
    for w in range(4): a(f"v_exp_f32 v{48+2*w}, v{48+2*w}")
    a("v_mul_f32 v58, v48, v49")
    for w in range(1, 4): a(f"v_fmac_f32 v58, v{48+2*w}, v{48+2*w+1}")
    a(f"v_mov_b32 v57, s{S_T}")
    a(f"v_mov_b32 v59, s{S_T}")
    a(f"s_lshl_b32 s{S_T0}, s2, 4")
    a(f"s_add_u32 s{S_T0}, s{S_T0}, {W_ML:#x}")
    a("v_mov_b32 v44, 0")
    a("s_mov_b64 exec, 1")
    a(f"buffer_store_dwordx4 v[56:59], v44, s[{SRD_WS}:{SRD_WS+3}], s{S_T0} offen sc1")
    a("s_mov_b64 exec, -1")
    a(f"s_and_b32 s{S_T4}, s2, 31")
    a(f"s_cmp_ge_u32 s{S_T4}, 28")
    a("s_cbranch_scc1 L_s3_b2")
    a("v_and_b32 v46, 31, v1")
    a("v_mul_u32_u24 v44, 3584, v46")
    a("v_lshrrev_b32 v47, 5, v1")
    a("v_lshl_add_u32 v44, v47, 6, v44")
    a("v_lshlrev_b32 v46, 4, v46")
    a(f"s_mul_i32 s{S_T1}, s{S_B}, {32*3584}")
    a(f"s_lshl_b32 s{S_T2}, s{S_T4}, 7")
    a(f"s_add_u32 s{S_T1}, s{S_T1}, s{S_T2}")
    a(f"s_add_u32 s{S_T1}, s{S_T1}, {W_Y:#x}")
    a(f"s_lshl_b32 s{S_T2}, s{S_B}, 9")
    a(f"s_add_u32 s{S_T2}, s{S_T2}, {W_ML:#x}")
    g.poll([f"buffer_load_dwordx4 v[{64+4*q}:{64+4*q+3}], v44, s[{SRD_WS}:{SRD_WS+3}], s{S_T1} offen offset:{q*16} sc1" for q in range(4)] +
           [f"buffer_load_dwordx4 v[80:83], v46, s[{SRD_WS}:{SRD_WS+3}], s{S_T2} offen sc1"],
           [65, 67, 69, 71, 73, 75, 77, 79, 81, 83])
    g.stamp(7)
    a("v_mov_b32_dpp v84, v80 quad_perm:[1,0,3,2] row_mask:0xf bank_mask:0xf")
    a("v_mov_b32_dpp v85, v82 quad_perm:[1,0,3,2] row_mask:0xf bank_mask:0xf")
    a("v_max_f32 v86, v80, v84")
    a("v_sub_f32 v80, v80, v86")
    a("v_sub_f32 v84, v84, v86")
    a("v_exp_f32 v80, v80")
    a("v_exp_f32 v84, v84")
    a("v_mul_f32 v82, v82, v80")
    a("v_fmac_f32 v82, v85, v84")
    a("v_rcp_f32 v82, v82")
    a("v_mul_f32 v80, v80, v82")
    Z = [64, 66, 68, 70, 72, 74, 76, 78]
    for z in Z: a(f"v_mul_f32 v{z}, v{z}, v80")
    g.treduce8(Z)
    g.rnd(74, 86)
    a("v_mul_f32 v74, v74, v41")
    g.rnd(74, 86)
    a("v_add_f32 v74, v74, v40")
    g.rnd(74, 86)
    a("v_mov_b32 v60, v74")
    a(f"v_mov_b32 v61, s{S_T}")
    a("v_lshlrev_b32 v46, 3, v45")
    a(f"s_mul_i32 s{S_T1}, s{S_B}, 3584")
    a(f"s_lshl_b32 s{S_T2}, s{S_T4}, 7")
    a(f"s_add_u32 s{S_T1}, s{S_T1}, s{S_T2}")
    a(f"s_add_u32 s{S_T1}, s{S_T1}, {W_X1:#x}")
    a("s_mov_b32 exec_lo, 0x11111111")
    a("s_mov_b32 exec_hi, 0x11111111")
    a(f"buffer_store_dwordx2 v[60:61], v46, s[{SRD_WS}:{SRD_WS+3}], s{S_T1} offen sc1")
    a("s_mov_b64 exec, -1")
    g.stamp(8)
    a.label("L_s3_b2")
    a(f"s_and_b32 s{S_T0}, s2, 63")
    a(f"s_cmp_ge_u32 s{S_T0}, 56")
    a("s_cbranch_scc1 L_s3_nob")
    a("s_barrier")
    a("s_barrier")
    a.label("L_s3_nob")
    a(f"s_cmp_ge_u32 s{S_T4}, 28")
    a("s_cbranch_scc1 L_fin")
    a("v_and_b32 v46, 31, v1")
    a("v_mul_u32_u24 v44, 7168, v46")
    a("v_lshrrev_b32 v47, 5, v1")
    a("v_lshl_add_u32 v44, v47, 6, v44")
    a(f"s_lshr_b32 s{S_T1}, s2, 6")
    a(f"s_mul_i32 s{S_T1}, s{S_T1}, {56*7168}")
    a(f"s_and_b32 s{S_T2}, s{S_B}, 1")
    a(f"s_mul_i32 s{S_T2}, s{S_T2}, 3584")
    a(f"s_add_u32 s{S_T1}, s{S_T1}, s{S_T2}")
    a(f"s_lshl_b32 s{S_T2}, s{S_T4}, 7")
    a(f"s_add_u32 s{S_T1}, s{S_T1}, s{S_T2}")
    a(f"s_add_u32 s{S_T1}, s{S_T1}, {W_F:#x}")
    a(f"s_add_u32 s{S_T2}, s{S_T1}, {32*7168}")
    a("v_cmp_gt_u32 vcc, 24, v46")
    a(f"s_mov_b64 s[{S_EX}:{S_EX+1}], vcc")
    a(f"v_add_u32 v47, {32*7168}, v44")
    a(f"v_cndmask_b32 v47, v44, v47, s[{S_EX}:{S_EX+1}]")
    g.poll([f"buffer_load_dwordx4 v[{64+4*q}:{64+4*q+3}], v44, s[{SRD_WS}:{SRD_WS+3}], s{S_T1} offen offset:{q*16} sc1" for q in range(4)] +
           [f"buffer_load_dwordx4 v[{80+4*q}:{80+4*q+3}], v47, s[{SRD_WS}:{SRD_WS+3}], s{S_T1} offen offset:{q*16} sc1" for q in range(4)],
           [65, 67, 69, 71, 73, 75, 77, 79, 81, 83, 85, 87, 89, 91, 93, 95])
    g.stamp(9)
    for e in range(8):
        a(f"v_cndmask_b32 v{80+2*e}, 0, v{80+2*e}, s[{S_EX}:{S_EX+1}]")
    for e in range(8):
        a(f"v_add_f32 v{64+2*e}, v{64+2*e}, v{80+2*e}")
    g.treduce8(Z)
    g.rnd(74, 86)
    a("v_mul_f32 v74, v74, v42")
    g.rnd(74, 86)
    a("v_add_f32 v74, v74, v60")
    a("v_cvt_pk_bf16_f32 v74, v74, v74")
    a(f"s_lshr_b32 s{S_T1}, s{S_T4}, 2")
    a(f"s_lshl_b32 s{S_T1}, s{S_T1}, 6")
    a(f"s_and_b32 s{S_T2}, s{S_T4}, 3")
    a(f"s_add_u32 s{S_T1}, s{S_T1}, s{S_T2}")
    a(f"s_mul_i32 s{S_T2}, s{S_B}, 448")
    a(f"s_add_u32 s{S_T1}, s{S_T1}, s{S_T2}")
    a(f"s_lshl_b32 s{S_T1}, s{S_T1}, 1")
    a("v_lshlrev_b32 v46, 3, v45")
    g.srd(SRD_A, S_OUT, 7168)
    a("s_mov_b32 exec_lo, 0x11111111")
    a("s_mov_b32 exec_hi, 0x11111111")
    a(f"buffer_store_short v74, v46, s[{SRD_A}:{SRD_A+3}], s{S_T1} offen")
    a("s_mov_b64 exec, -1")
    g.stamp(10)
    a("s_cmp_lg_u32 s2, 0")
    a("s_cbranch_scc1 L_fin")
    g.srd(SRD_A, S_DBG, 256)
    a("v_mov_b32 v44, 0")
    Lp = "L_ep"; Lpd = "L_epd"
    a(f"s_mov_b32 s{S_SPIN}, 0")
    a.label(Lp)
    a(f"buffer_load_dword v46, v44, s[{SRD_A}:{SRD_A+3}], 0 offen sc1")
    a("s_waitcnt vmcnt(0)")
    a(f"v_readfirstlane_b32 s{S_T0}, v46")
    a(f"s_cmp_ge_u32 s{S_T0}, 256")
    a(f"s_cbranch_scc1 {Lpd}")
    a(f"s_add_u32 s{S_SPIN}, s{S_SPIN}, 1")
    a(f"s_cmp_ge_u32 s{S_SPIN}, {SPIN_LIMIT:#x}")
    a(f"s_cbranch_scc1 {Lpd}")
    a("s_sleep 1")
    a(f"s_branch {Lp}")
    a.label(Lpd)
    a(f"v_mov_b32 v46, s{S_T}")
    a("s_mov_b64 exec, 1")
    a(f"buffer_store_dword v46, v44, s[{SRD_WS}:{SRD_WS+3}], 0 offen offset:{W_EPOCH} sc1")
    a("s_mov_b64 exec, -1")
    a("s_branch L_fin")

    a.label("L_pcons")
    g.macro(P0K, P0V, False, [None]*16)
    g.macro(P1K, P1V, False, [None]*16)
    g.stamp(3)
    a(f"s_mov_b32 s{S_FIRST}, 0")
    a("s_branch L_back")
    a.label("L_helper")
    if g.opts.get("noq"):
        g.lds_arrive(C_WO, 9, 10)
        a("s_barrier")
        a("s_branch L_fin")
    a("s_setprio 3")
    a(f"s_sub_u32 s{S_HW}, s3, 4")
    g.srd(SRD_C, S_X, 7168)
    a("s_cmp_ge_u32 s2, 42")
    a("s_cbranch_scc1 L_noA")
    a("s_cmp_ge_u32 s2, 14")
    a("s_cbranch_scc1 L_normA")
    phaseA_urgent(g)
    a("s_branch L_noA")
    a.label("L_normA")
    phaseA(g)
    a.label("L_noA")
    g.srd(SRD_A, S_WQ, 448*8192)
    a("v_lshrrev_b32 v2, 4, v1")
    a("v_lshlrev_b32 v2, 16, v2")
    a("v_and_b32 v3, 15, v1")
    a("v_lshl_add_u32 v2, v3, 1, v2")
    a(f"s_and_b32 s{S_T0}, s2, 7")
    a(f"s_lshl_b32 s{S_T0}, s{S_T0}, 5")
    a(f"s_lshr_b32 s{S_T1}, s2, 3")
    a(f"s_add_u32 s{S_T4}, s{S_T0}, s{S_T1}")
    a(f"s_lshl_b32 s{S_T2}, s{S_T4}, 5")
    a(f"s_lshl_b32 s{S_T3}, s{S_HW}, 18")
    a(f"s_add_u32 s{S_T2}, s{S_T2}, s{S_T3}")
    for i in range(4):
        a(f"s_add_u32 s{S_T3}, s{S_T2}, {4*i*32*8192}")
        for e in range(8):
            a(f"buffer_load_ushort v{96+8*i+e}, v2, s[{SRD_A}:{SRD_A+3}], s{S_T3} offen")
            a(f"s_add_u32 s{S_T3}, s{S_T3}, 8192")
    a("s_waitcnt lgkmcnt(0)")
    tagcalc(a)
    a(f"s_cmp_lg_u32 s{S_HW}, 0")
    a("s_cbranch_scc1 L_nocnt")
    g.srd(SRD_B, S_DBG, 256)
    a("v_mov_b32 v8, 0")
    a("v_mov_b32 v9, 1")
    a("s_mov_b64 exec, 1")
    a(f"buffer_atomic_add v9, v8, s[{SRD_B}:{SRD_B+3}], 0 offen sc1")
    a("s_mov_b64 exec, -1")
    a.label("L_nocnt")
    g.stamp(1)
    a("v_and_b32 v3, 7, v1")
    a(f"v_mul_u32_u24 v3, {224*8}, v3")
    a("v_lshrrev_b32 v4, 4, v1")
    a("v_lshl_add_u32 v3, v4, 5, v3")
    a(f"s_lshl_b32 s{S_T1}, s{S_HW}, 7")
    a(f"s_add_u32 s{S_T1}, s{S_T1}, {W_H:#x}")
    a(f"s_add_u32 s{S_T2}, s{S_T1}, 1536")
    a(f"s_add_u32 s{S_T3}, s{S_T1}, 1024")
    a(f"s_cmp_ge_u32 s{S_HW}, 2")
    a(f"s_cselect_b32 s{S_T2}, s{S_T3}, s{S_T2}")
    lds_ = []
    for i in range(4):
        if i < 3:
            lds_.append(f"buffer_load_dwordx4 v[{32+8*i}:{32+8*i+3}], v3, s[{SRD_WS}:{SRD_WS+3}], s{S_T1} offen offset:{i*512} sc1")
            lds_.append(f"buffer_load_dwordx4 v[{32+8*i+4}:{32+8*i+7}], v3, s[{SRD_WS}:{SRD_WS+3}], s{S_T1} offen offset:{i*512+16} sc1")
        else:
            lds_.append(f"buffer_load_dwordx4 v[{32+8*i}:{32+8*i+3}], v3, s[{SRD_WS}:{SRD_WS+3}], s{S_T2} offen sc1")
            lds_.append(f"buffer_load_dwordx4 v[{32+8*i+4}:{32+8*i+7}], v3, s[{SRD_WS}:{SRD_WS+3}], s{S_T2} offen offset:16 sc1")
    g.poll(lds_, [33 + 2*k for k in range(16)])
    g.stamp(2)
    for i in range(4):
        for d in range(4):
            a(f"v_lshl_or_b32 v{16+4*i+d}, v{96+8*i+2*d+1}, 16, v{96+8*i+2*d}")
    for i in range(4):
        for d in range(4):
            a(f"v_mov_b32 v{64+4*i+d}, v{32+8*i+2*d}")
    for i in range(4):
        if i == 3:
            a(f"s_cmp_ge_u32 s{S_HW}, 2")
            a("s_cbranch_scc1 L_B3")
        cc = "0" if i == 0 else "v[80:83]"
        a(f"v_mfma_f32_16x16x32_bf16 v[80:83], v[{64+4*i}:{64+4*i+3}], v[{16+4*i}:{16+4*i+3}], {cc}")
    a.label("L_B3")
    a("s_nop 7")
    a("v_lshlrev_b32 v9, 4, v1")
    a(f"s_lshl_b32 s{S_T0}, s{S_HW}, 9")
    a(f"v_add_u32 v10, s{S_T0}, v9")
    a("s_mov_b32 exec_lo, -1"); a("s_mov_b32 exec_hi, 0")
    a(f"ds_write_b128 v10, v[80:83] offset:{L_OROW}")
    a("s_mov_b64 exec, -1")
    g.lds_arrive(C_H, 11, 12)
    g.lds_wait(C_H, 4, 11, 12, sleep=0)
    a(f"s_lshl_b32 s{S_T0}, s{S_HW}, 2")
    a(f"v_add_u32 v10, s{S_T0}, v9")
    for src in range(4):
        a(f"ds_read_b32 v{32+src}, v10 offset:{L_OROW + src*512}")
    a("s_waitcnt lgkmcnt(0)")
    a("v_add_f32 v32, v32, v33")
    a("v_add_f32 v34, v34, v35")
    a("v_add_f32 v32, v32, v34")
    a("v_mov_b32_dpp v33, v32 quad_perm:[1,0,3,2] row_mask:0xf bank_mask:0xf")
    a("v_cvt_pk_bf16_f32 v34, v32, v33")
    a(f"v_mov_b32 v35, s{S_T}")
    a("v_lshrrev_b32 v9, 4, v1")
    a("v_lshlrev_b32 v9, 16, v9")
    a("v_and_b32 v10, 15, v1")
    a("v_lshl_add_u32 v9, v10, 2, v9")
    a(f"s_lshl_b32 s{S_T0}, s{S_HW}, 14")
    a(f"s_lshl_b32 s{S_T1}, s{S_T4}, 6")
    a(f"s_add_u32 s{S_T0}, s{S_T0}, s{S_T1}")
    a(f"s_add_u32 s{S_T0}, s{S_T0}, {W_Q:#x}")
    a("s_mov_b32 exec_lo, 0x55555555"); a("s_mov_b32 exec_hi, 0")
    a(f"buffer_store_dwordx2 v[34:35], v9, s[{SRD_WS}:{SRD_WS+3}], s{S_T0} offen sc1")
    a("s_mov_b64 exec, -1")
    g.stamp(3)
    a(f"s_cmp_lg_u32 s{S_HW}, 0")
    a("s_cbranch_scc1 L_noq")
    a(f"s_lshl_b32 s{S_T0}, s{S_B}, 14")
    a(f"s_lshl_b32 s{S_T1}, s{S_HD}, 10")
    a(f"s_add_u32 s{S_T0}, s{S_T0}, s{S_T1}")
    a(f"s_add_u32 s{S_T0}, s{S_T0}, {W_Q:#x}")
    a("v_lshlrev_b32 v9, 4, v1")
    g.poll([f"buffer_load_dwordx4 v[32:35], v9, s[{SRD_WS}:{SRD_WS+3}], s{S_T0} offen sc1"], [33, 35])
    a("v_mov_b32 v33, v34")
    a("v_lshlrev_b32 v9, 3, v1")
    a(f"ds_write_b64 v9, v[32:33] offset:{L_Q}")
    g.lds_arrive(C_Q, 10, 11)
    a.label("L_noq")
    a(f"s_setprio {int(g.opts.get('prio', 3))}")
    g.stamp(4)
    if g.opts.get("noprep"):
        g.lds_arrive(C_WO, 9, 10)
    else:
        helper_tail_prep(g)
    g.stamp(5)
    a("s_barrier")
    g.stamp(6)
    T1(g, 128, 40, 24, [8, 12, 13, 14, 15, 16, 17, 18, 19, 20, 21, 22, 10, 11], S_HW)
    g.stamp(7)
    a(f"s_and_b32 s{S_T0}, s2, 63")
    a(f"s_cmp_ge_u32 s{S_T0}, 56")
    a("s_cbranch_scc1 L_fin")
    a("v_lshlrev_b32 v8, 4, v1")
    a(f"s_lshl_b32 s{S_T0}, s{S_HW}, 12")
    a(f"s_add_u32 s{S_T0}, s{S_T0}, {L_DOWN}")
    a(f"v_add_u32 v8, s{S_T0}, v8")
    for c in range(4):
        a(f"ds_read_b128 v[{128+4*c}:{128+4*c+3}], v8 offset:{c*1024}")
    for c in range(4):
        a(f"ds_read_b128 v[{144+4*c}:{144+4*c+3}], v8 offset:{16384 + c*1024}")
    a("v_bfe_u32 v9, v1, 2, 1")
    a(f"v_mul_u32_u24 v9, {H2_STRIDE}, v9")
    a("v_lshrrev_b32 v10, 4, v1")
    a("v_lshl_add_u32 v9, v10, 4, v9")
    a(f"s_lshr_b32 s{S_T1}, s{S_HW}, 1")
    a(f"s_mul_i32 s{S_T1}, s{S_T1}, {7*64}")
    a(f"v_add_u32 v9, s{S_T1}, v9")
    a("s_waitcnt lgkmcnt(0)")
    a("s_barrier")
    g.stamp(8)
    for i in range(7):
        a(f"ds_read_b128 v[{40+4*i}:{40+4*i+3}], v9 offset:{L_H2 + i*64}")
    a("s_waitcnt lgkmcnt(0)")
    for i in range(7):
        for c in range(2):
            cc = "0" if i == 0 else f"v[{24+4*c}:{24+4*c+3}]"
            a(f"v_mfma_f32_16x16x32_bf16 v[{24+4*c}:{24+4*c+3}], v[{40+4*i}:{40+4*i+3}], v[{72+(i*2+c)*4}:{72+(i*2+c)*4+3}], {cc}")
    a("v_lshlrev_b32 v10, 2, v1")
    a(f"s_lshl_b32 s{S_T0}, s{S_HW}, 8")
    a(f"v_add_u32 v11, s{S_T0}, v10")
    a("s_mov_b32 exec_lo, -1"); a("s_mov_b32 exec_hi, 0")
    a(f"ds_write_b32 v11, v24 offset:{L_GU}")
    a(f"ds_write_b32 v11, v28 offset:{L_GU+128}")
    a("s_mov_b64 exec, -1")
    a("s_waitcnt lgkmcnt(0)")
    a("s_barrier")
    g.stamp(9)
    for w in range(4):
        a(f"ds_read_b32 v{32+w}, v10 offset:{L_GU + w*256}")
    a("s_waitcnt lgkmcnt(0)")
    a("v_add_f32 v32, v32, v34")
    a("v_add_f32 v33, v33, v35")
    g.rnd2(32, 33, 34)
    a("v_mul_f32 v34, v32, v32")
    a(f"v_mov_b32 v36, {f2u(0.044715):#x}")
    a("v_fma_f32 v34, v34, v36, 1.0")
    a("v_mul_f32 v34, v34, v32")
    a(f"v_mul_f32 v34, {f2u(-2*0.7978845608028654*1.4426950408889634):#x}, v34")
    a("v_exp_f32 v34, v34")
    a("v_add_f32 v34, 1.0, v34")
    a("v_rcp_f32 v34, v34")
    a("v_mul_f32 v32, v32, v34")
    g.rnd(32, 34)
    a("v_mul_f32 v32, v32, v33")
    a("v_cvt_pk_bf16_f32 v32, v32, v32")
    a("v_and_b32 v33, 15, v1")
    a("v_lshlrev_b32 v33, 2, v33")
    a("v_lshrrev_b32 v34, 5, v1")
    a("v_lshl_add_u32 v33, v34, 1, v33")
    a("v_bfe_u32 v34, v1, 4, 1")
    a("v_lshl_add_u32 v33, v34, 6, v33")
    a(f"s_lshl_b32 s{S_T0}, s{S_HW}, 7")
    a(f"s_add_u32 s{S_T0}, s{S_T0}, {L_ACT}")
    a(f"v_add_u32 v33, s{S_T0}, v33")
    a("ds_write_b16 v33, v32")
    a("v_bfe_u32 v34, v1, 2, 1")
    a("v_lshlrev_b32 v34, 6, v34")
    a("v_lshrrev_b32 v35, 4, v1")
    a("v_lshl_add_u32 v34, v35, 4, v34")
    a(f"v_add_u32 v34, s{S_T0}, v34")
    a("s_waitcnt lgkmcnt(0)")
    a("ds_read_b128 v[40:43], v34")
    a("s_waitcnt lgkmcnt(0)")
    for k in range(8):
        a(f"v_mfma_f32_16x16x32_bf16 v[{160+4*k}:{160+4*k+3}], v[40:43], v[{128+4*k}:{128+4*k+3}], 0")
    a("v_bfe_u32 v33, v1, 4, 1")
    a("v_mul_u32_u24 v33, 3584, v33")
    a("v_lshrrev_b32 v34, 5, v1")
    a("v_lshl_add_u32 v33, v34, 7, v33")
    a("v_and_b32 v34, 15, v1")
    a("v_lshl_add_u32 v33, v34, 3, v33")
    a(f"s_lshr_b32 s{S_T0}, s2, 6")
    a(f"s_mul_i32 s{S_T0}, s{S_T0}, 56")
    a(f"s_and_b32 s{S_T1}, s2, 63")
    a(f"s_add_u32 s{S_T0}, s{S_T0}, s{S_T1}")
    a(f"s_mul_i32 s{S_T0}, s{S_T0}, 7168")
    a(f"s_lshl_b32 s{S_T1}, s{S_HW}, 9")
    a(f"s_add_u32 s{S_T0}, s{S_T0}, s{S_T1}")
    a(f"s_add_u32 s{S_T0}, s{S_T0}, {W_F:#x}")
    a(f"v_mov_b32 v37, s{S_T}")
    a(f"v_mov_b32 v39, s{S_T}")
    for half in range(2):
        if half == 1:
            a(f"s_cmp_eq_u32 s{S_HW}, 3")
            a("s_cbranch_scc1 L_fin")
        for pr in range(2):
            d0 = 160 + 16*half + 8*pr; d1 = d0 + 4
            o = 36 + 2*pr
            a(f"v_mov_b32 v{o}, v{d0}")
            a(f"v_mov_b32_dpp v{o}, v{d1} quad_perm:[0,1,2,3] row_mask:0xc bank_mask:0xf")
            a(f"buffer_store_dwordx2 v[{o}:{o+1}], v33, s[{SRD_WS}:{SRD_WS+3}], s{S_T0} offen offset:{half*2048 + pr*256} sc1")
    g.stamp(10)
    a.label("L_fin")
    if g.stamps:
        g.write_stamps()
    a.label("L_end")
    a("s_endpgm")

def layernorm_list(g, X, t):
    a = g.a
    s, u, q, d, mb, ri = t
    a(f"v_add_f32 v{s}, v{X[0]}, v{X[1]}")
    for e in range(2, 8): a(f"v_add_f32 v{s}, v{s}, v{X[e]}")
    g.allreduce64(s, u)
    a(f"v_mul_f32 v{s}, {f2u(1.0/448):#x}, v{s}")
    a(f"v_sub_f32 v{d}, v{X[0]}, v{s}")
    a(f"v_mul_f32 v{q}, v{d}, v{d}")
    for e in range(1, 8):
        a(f"v_sub_f32 v{d}, v{X[e]}, v{s}")
        a(f"v_fmac_f32 v{q}, v{d}, v{d}")
    a(f"s_mov_b32 s{S_EX}, -1")
    a(f"s_mov_b32 s{S_EX+1}, 0x00ffffff")
    a(f"v_cndmask_b32 v{q}, 0, v{q}, s[{S_EX}:{S_EX+1}]")
    g.allreduce64(q, u)
    a(f"v_mul_f32 v{q}, {f2u(1.0/448):#x}, v{q}")
    a(f"v_mov_b32 v{mb}, v{s}")
    g.rnd2(mb, q, u)
    a(f"v_add_f32 v{q}, {f2u(1e-5):#x}, v{q}")
    g.rnd(q, u)
    a(f"v_sqrt_f32 v{q}, v{q}")
    g.rnd(q, u)
    a(f"v_rcp_f32 v{ri}, v{q}")
    return mb, ri

def silu_part(g, C0):
    a = g.a
    F = C0 + 8; E = C0 + 24
    for d in range(8):
        a(f"v_lshlrev_b32 v{F+2*d}, 16, v{C0+d}")
        a(f"v_and_b32 v{F+2*d+1}, 0xffff0000, v{C0+d}")
    for e in range(16): a(f"v_mul_f32 v{E+e}, {f2u(-1.4426950408889634):#x}, v{F+e}")
    for e in range(16): a(f"v_exp_f32 v{E+e}, v{E+e}")
    for e in range(16): a(f"v_add_f32 v{E+e}, 1.0, v{E+e}")
    for e in range(16): a(f"v_rcp_f32 v{E+e}, v{E+e}")
    for e in range(16): a(f"v_mul_f32 v{F+e}, v{F+e}, v{E+e}")
    for d in range(8): a(f"v_cvt_pk_bf16_f32 v{C0+d}, v{F+2*d}, v{F+2*d+1}")
    a(f"ds_write_b128 v8, v[{C0}:{C0+3}] offset:{L_S}")
    L = a.newlabel("L_si")
    a(f"s_cmp_eq_u32 s{S_HW}, 3")
    a(f"s_cbranch_scc1 {L}")
    a(f"ds_write_b128 v8, v[{C0+4}:{C0+7}] offset:{L_S+4096}")
    a.label(L)

def c_loads(g, C0):
    a = g.a
    g.srd(SRD_B, S_C, 7168)
    a(f"s_lshl_b32 s{S_T0}, s{S_HW}, 10")
    a("v_lshlrev_b32 v8, 4, v1")
    a(f"v_add_u32 v8, s{S_T0}, v8")
    a(f"buffer_load_dwordx4 v[{C0}:{C0+3}], v8, s[{SRD_B}:{SRD_B+3}], 0 offen")
    a(f"s_mov_b32 s{S_T1}, 4096")
    a(f"buffer_load_dwordx4 v[{C0+4}:{C0+7}], v8, s[{SRD_B}:{SRD_B+3}], s{S_T1} offen")

def phaseA_urgent(g):
    a = g.a
    C0 = 16
    c_loads(g, C0)
    for r in range(56, 64): a(f"v_mov_b32 v{r}, 0")
    a("v_lshlrev_b32 v9, 4, v1")
    a(f"s_mul_i32 s{S_T1}, s{S_HW}, 1792")
    a("s_mov_b32 exec_lo, -1"); a("s_mov_b32 exec_hi, 0x00ffffff")
    a(f"buffer_load_dwordx4 v[56:59], v9, s[{SRD_C}:{SRD_C+3}], s{S_T1} offen")
    a(f"buffer_load_dwordx4 v[60:63], v9, s[{SRD_C}:{SRD_C+3}], s{S_T1} offen offset:896")
    a("s_mov_b64 exec, -1")
    a("v_bfe_u32 v10, v1, 4, 1")
    a(f"v_mul_u32_u24 v10, {4*896}, v10")
    a("v_and_b32 v3, 15, v1")
    a("v_lshl_add_u32 v10, v3, 2, v10")
    a(f"s_mul_i32 s{S_T1}, s{S_HW}, 896")
    a(f"s_lshl_b32 s{S_T2}, s2, 6")
    a(f"s_add_u32 s{S_T1}, s{S_T1}, s{S_T2}")
    a(f"buffer_load_dword v64, v10, s[{SRD_C}:{SRD_C+3}], s{S_T1} offen")
    g.srd(SRD_A, S_WMOD, 448*5376)
    a("v_lshrrev_b32 v2, 4, v1")
    a(f"v_mul_u32_u24 v2, {8*5376}, v2")
    a("v_lshl_add_u32 v2, v3, 2, v2")
    a(f"s_and_b32 s{S_T3}, s{S_HW}, 1")
    a(f"s_mul_i32 s{S_T3}, s{S_T3}, 896")
    a(f"s_add_u32 s{S_T2}, s{S_T2}, s{S_T3}")
    a(f"s_lshr_b32 s{S_T3}, s{S_HW}, 1")
    a(f"s_mul_i32 s{S_T3}, s{S_T3}, {7*32*5376}")
    a(f"s_add_u32 s{S_T2}, s{S_T2}, s{S_T3}")
    RAW = lambda i: 72 + 8 * i
    FR = lambda i: 128 + 8 * i
    for i in range(7):
        g.loads2(RAW(i), 2, SRD_A, S_T2, 5376)
        a(f"s_add_u32 s{S_T2}, s{S_T2}, {24*5376}")
    g.stamp(12)
    a("s_waitcnt vmcnt(59)")
    g.stamp(13)
    silu_part(g, C0)
    a("s_waitcnt vmcnt(57)")
    for rr in range(2):
        src = 56 + 4 * rr
        X = list(range(16, 24))
        for d in range(4):
            a(f"v_lshlrev_b32 v{16+2*d}, 16, v{src+d}")
            a(f"v_and_b32 v{16+2*d+1}, 0xffff0000, v{src+d}")
        mb, ri = layernorm_list(g, X, [24, 25, 26, 27, 28 + 2*rr, 29 + 2*rr])
    a(f"s_lshl_b32 s{S_T0}, s{S_HW}, 4")
    a(f"v_mov_b32 v9, s{S_T0}")
    a("s_mov_b64 exec, 1")
    a(f"ds_write_b128 v9, v[28:31] offset:{L_ST}")
    a("s_mov_b64 exec, -1")
    g.lds_arrive(C_S, 9, 10)
    g.lds_wait(C_S, 4, 9, 10, sleep=0)
    a("v_and_b32 v9, 7, v1")
    a("v_mul_u32_u24 v9, 896, v9")
    a("v_lshrrev_b32 v10, 4, v1")
    a("v_lshl_add_u32 v9, v10, 4, v9")
    a(f"s_lshr_b32 s{S_T0}, s{S_HW}, 1")
    a(f"s_mul_i32 s{S_T0}, s{S_T0}, {7*64}")
    a(f"v_add_u32 v9, s{S_T0}, v9")
    AF = lambda i: 184 + 4 * i
    for i in range(7):
        a(f"ds_read_b128 v[{AF(i)}:{AF(i)+3}], v9 offset:{L_S + i*64}")
    a("v_bfe_u32 v10, v1, 4, 1")
    a("v_lshlrev_b32 v10, 5, v10")
    a(f"s_lshl_b32 s{S_T0}, s{S_HW}, 3")
    a(f"v_add_u32 v10, s{S_T0}, v10")
    a(f"ds_read_b64 v[66:67], v10 offset:{L_ST}")
    g.stamp(14)
    for i in range(7):
        a(f"s_waitcnt vmcnt({48 - 8*i})")
        g.build2(RAW(i), FR(i))
    g.stamp(15)
    a("s_waitcnt lgkmcnt(0)")
    D = 212
    for i in range(7):
        for c in range(2):
            cc = "0" if i == 0 else f"v[{D+4*c}:{D+4*c+3}]"
            a(f"v_mfma_f32_16x16x32_bf16 v[{D+4*c}:{D+4*c+3}], v[{AF(i)}:{AF(i)+3}], v[{FR(i)+4*c}:{FR(i)+4*c+3}], {cc}")
    a("v_lshlrev_b32 v68, 16, v64")
    a("v_and_b32 v69, 0xffff0000, v64")
    a("v_sub_f32 v68, v68, v66")
    a("v_sub_f32 v69, v69, v66")
    g.rnd2(68, 69, 70)
    a("v_mul_f32 v68, v68, v67")
    a("v_mul_f32 v69, v69, v67")
    g.rnd2(68, 69, 70)
    a("v_lshlrev_b32 v9, 4, v1")
    a(f"s_lshl_b32 s{S_T0}, s{S_HW}, 10")
    a(f"v_add_u32 v10, s{S_T0}, v9")
    a("s_mov_b32 exec_lo, -1"); a("s_mov_b32 exec_hi, 0")
    for c in range(2):
        a(f"ds_write_b128 v10, v[{D+4*c}:{D+4*c+3}] offset:{L_PA + c*512}")
    a("s_mov_b64 exec, -1")
    g.lds_arrive(C_A, 11, 12)
    g.lds_wait(C_A, 4, 11, 12, sleep=0)
    a(f"s_lshl_b32 s{S_T0}, s{S_HW}, 2")
    a(f"v_add_u32 v10, s{S_T0}, v9")
    for src in range(4):
        for c in range(2):
            a(f"ds_read_b32 v{16+2*src+c}, v10 offset:{L_PA + src*1024 + c*512}")
    a("s_waitcnt lgkmcnt(0)")
    for c in range(2):
        a(f"v_add_f32 v{16+c}, v{16+c}, v{20+c}")
        a(f"v_add_f32 v{18+c}, v{18+c}, v{22+c}")
    g.rnd2(16, 17, 24)
    g.rnd2(18, 19, 24)
    a("v_add_f32 v18, 1.0, v18")
    a("v_add_f32 v19, 1.0, v19")
    g.rnd2(18, 19, 24)
    a("v_mul_f32 v68, v68, v18")
    a("v_mul_f32 v69, v69, v19")
    g.rnd2(68, 69, 24)
    a("v_add_f32 v68, v68, v16")
    a("v_add_f32 v69, v69, v17")
    a("v_cvt_pk_bf16_f32 v68, v68, v69")
    a(f"s_mul_i32 s{S_T5}, s{S_T}, 1664525")
    a(f"s_add_u32 s{S_T5}, s{S_T5}, 1013904223")
    a(f"v_mov_b32 v69, s{S_T5}")
    a("v_lshrrev_b32 v9, 4, v1")
    a(f"v_mul_u32_u24 v9, {4*224*8}, v9")
    a("v_and_b32 v10, 15, v1")
    a("v_lshl_add_u32 v9, v10, 3, v9")
    a(f"s_mul_i32 s{S_T0}, s{S_HW}, {224*8}")
    a(f"s_lshl_b32 s{S_T1}, s2, 7")
    a(f"s_add_u32 s{S_T0}, s{S_T0}, s{S_T1}")
    a(f"s_add_u32 s{S_T0}, s{S_T0}, {W_H:#x}")
    a("s_mov_b32 exec_lo, -1"); a("s_mov_b32 exec_hi, 0")
    a(f"buffer_store_dwordx2 v[68:69], v9, s[{SRD_WS}:{SRD_WS+3}], s{S_T0} offen sc1")
    a("s_mov_b64 exec, -1")
    g.stamp(11)

def phaseA(g):
    a = g.a
    C0 = 16
    c_loads(g, C0)
    g.srd(SRD_A, S_WMOD, 448*5376)
    a("v_lshrrev_b32 v2, 4, v1")
    a(f"v_mul_u32_u24 v2, {8*5376}, v2")
    a("v_and_b32 v3, 15, v1")
    a("v_lshl_add_u32 v2, v3, 3, v2")
    a(f"s_lshl_b32 s{S_T2}, s2, 7")
    a(f"s_mul_i32 s{S_T3}, s{S_HW}, {32*5376}")
    a(f"s_add_u32 s{S_T2}, s{S_T2}, s{S_T3}")
    RAW = lambda i: 64 + 16 * i
    FR = lambda i: 128 + 16 * i
    for i in range(4):
        a(f"s_add_u32 s{S_T3}, s{S_T2}, {4*i*32*5376}")
        g.loads4(RAW(i), 2, SRD_A, S_T3, 5376)
    a("s_waitcnt vmcnt(32)")
    silu_part(g, C0)
    g.lds_arrive(C_S, 9, 10)
    g.lds_wait(C_S, 4, 9, 10, sleep=0)
    a("v_and_b32 v9, 7, v1")
    a("v_mul_u32_u24 v9, 896, v9")
    a("v_lshrrev_b32 v10, 4, v1")
    a("v_lshl_add_u32 v9, v10, 4, v9")
    a(f"s_lshl_b32 s{S_T0}, s{S_HW}, 6")
    a(f"v_add_u32 v9, s{S_T0}, v9")
    AF = lambda i: 192 + 4 * i
    for i in range(3):
        a(f"ds_read_b128 v[{AF(i)}:{AF(i)+3}], v9 offset:{L_S + i*256}")
    a(f"s_cmp_ge_u32 s{S_HW}, 2")
    a("s_cbranch_scc1 L_A2")
    a(f"ds_read_b128 v[{AF(3)}:{AF(3)+3}], v9 offset:{L_S + 3*256}")
    a.label("L_A2")
    D = 208
    for i in range(4):
        a(f"s_waitcnt vmcnt({24 - 8*i})")
        g.build4(RAW(i), FR(i))
    a("s_waitcnt lgkmcnt(0)")
    for i in range(4):
        if i == 3:
            a(f"s_cmp_ge_u32 s{S_HW}, 2")
            a("s_cbranch_scc1 L_A3")
        for c in range(4):
            cc = "0" if i == 0 else f"v[{D+4*c}:{D+4*c+3}]"
            a(f"v_mfma_f32_16x16x32_bf16 v[{D+4*c}:{D+4*c+3}], v[{AF(i)}:{AF(i)+3}], v[{FR(i)+4*c}:{FR(i)+4*c+3}], {cc}")
    a.label("L_A3")
    a("s_nop 7")
    a("v_lshlrev_b32 v9, 4, v1")
    a(f"s_lshl_b32 s{S_T0}, s{S_HW}, 11")
    a(f"v_add_u32 v10, s{S_T0}, v9")
    a("s_mov_b32 exec_lo, -1"); a("s_mov_b32 exec_hi, 0")
    for c in range(4):
        a(f"ds_write_b128 v10, v[{D+4*c}:{D+4*c+3}] offset:{L_PA + c*512}")
    a("s_mov_b64 exec, -1")
    g.lds_arrive(C_A, 11, 12)
    g.lds_wait(C_A, 4, 11, 12, sleep=0)
    a(f"s_lshl_b32 s{S_T0}, s{S_HW}, 9")
    a(f"v_add_u32 v10, s{S_T0}, v9")
    a("s_mov_b32 exec_lo, -1"); a("s_mov_b32 exec_hi, 0")
    for src in range(4):
        a(f"ds_read_b128 v[{16+4*src}:{16+4*src+3}], v10 offset:{L_PA + src*2048}")
    a("s_waitcnt lgkmcnt(0)")
    for r in range(4):
        a(f"v_add_f32 v{16+r}, v{16+r}, v{20+r}")
        a(f"v_add_f32 v{24+r}, v{24+r}, v{28+r}")
    for r in range(4):
        a(f"v_add_f32 v{16+r}, v{16+r}, v{24+r}")
    g.rnd2(16, 17, 20)
    g.rnd2(18, 19, 21)
    a(f"s_mul_i32 s{S_T5}, s{S_T}, 1664525")
    a(f"s_add_u32 s{S_T5}, s{S_T5}, 1013904223")
    a("v_lshrrev_b32 v9, 4, v1")
    a(f"v_mul_u32_u24 v9, {4*21504}, v9")
    a("v_and_b32 v10, 15, v1")
    a("v_lshl_add_u32 v9, v10, 3, v9")
    a(f"s_lshl_b32 s{S_T0}, s2, 2")
    a(f"s_add_u32 s{S_T0}, s{S_T0}, s{S_HW}")
    a(f"s_lshl_b32 s{S_T0}, s{S_T0}, 7")
    a(f"s_add_u32 s{S_T0}, s{S_T0}, {W_MOD:#x}")
    for r in range(4):
        a(f"v_mov_b32 v{24+2*r}, v{16+r}")
        a(f"v_mov_b32 v{24+2*r+1}, s{S_T5}")
    for r in range(4):
        a(f"buffer_store_dwordx2 v[{24+2*r}:{24+2*r+1}], v9, s[{SRD_WS}:{SRD_WS+3}], s{S_T0} offen sc1")
        a(f"s_add_u32 s{S_T0}, s{S_T0}, 21504")
    a("s_mov_b64 exec, -1")
    g.stamp(11)

class Pipe:
    def __init__(self, g, depth):
        self.g = g; self.depth = depth; self.blocks = []
    def add(self, issue, n, finish): self.blocks.append((issue, n, finish))
    def run(self):
        a = self.g.a; B = self.blocks; nb = len(B)
        issued = 0
        for k in range(nb):
            while issued < nb and issued < k + self.depth:
                B[issued][0](); issued += 1
            younger = sum(B[x][1] for x in range(k + 1, issued))
            a(f"s_waitcnt vmcnt({younger})")
            B[k][2]()

def helper_tail_prep(g):
    a = g.a
    depth = int(g.opts.get("depth", 2))
    wf = g.opts.get("wf", "")
    SB_DOWN, SB_GU, SB_WOS, SB_WOO = S_OFFA, S_OFFB, S_CNT, S_FIRST
    a(f"s_and_b32 s{S_T4}, s2, 63")
    a(f"s_lshr_b32 s{S_T0}, s{S_T4}, 3")
    a(f"s_and_b32 s{S_T1}, s{S_T4}, 7")
    a(f"s_lshr_b32 s{S_T2}, s{S_T0}, 1")
    a(f"s_lshl_b32 s{S_T2}, s{S_T2}, 4")
    a(f"s_lshl_b32 s{S_T3}, s{S_T1}, 1")
    a(f"s_add_u32 s{S_T2}, s{S_T2}, s{S_T3}")
    a(f"s_and_b32 s{S_T3}, s{S_T0}, 1")
    a(f"s_add_u32 s{S_T2}, s{S_T2}, s{S_T3}")
    a(f"s_add_u32 s{S_T3}, s{S_T1}, 48")
    a(f"s_cmp_eq_u32 s{S_T0}, 6")
    a(f"s_cselect_b32 s{S_T4}, s{S_T3}, s{S_T2}")
    a("v_lshrrev_b32 v2, 4, v1")
    a(f"v_mul_u32_u24 v2, {8*896}, v2")
    a("v_and_b32 v3, 15, v1")
    a("v_lshl_add_u32 v2, v3, 3, v2")
    a("v_lshrrev_b32 v8, 4, v1")
    a(f"v_mul_u32_u24 v8, {8*3584}, v8")
    a("v_lshl_add_u32 v8, v3, 2, v8")
    a(f"s_cmp_lg_u32 s{S_HW}, 3")
    a("s_cbranch_scc1 L_tp_nor1")
    a(f"s_and_b32 s{S_T5}, s2, 31")
    a(f"s_cmp_ge_u32 s{S_T5}, 28")
    a("s_cbranch_scc1 L_tp_nor1")
    a(f"s_mul_i32 s{S_T1}, s{S_B}, {6*3584}")
    a(f"s_lshl_b32 s{S_T2}, s{S_T5}, 7")
    a(f"s_add_u32 s{S_T1}, s{S_T1}, s{S_T2}")
    a(f"s_add_u32 s{S_T1}, s{S_T1}, {W_MOD + 2*3584:#x}")
    a(f"s_add_u32 s{S_T2}, s{S_T1}, {3*3584}")
    a("v_lshlrev_b32 v9, 3, v1")
    a(f"s_lshr_b32 s{S_T0}, s{S_T5}, 2")
    a(f"s_lshl_b32 s{S_T0}, s{S_T0}, 6")
    a(f"s_and_b32 s{S_T3}, s{S_T5}, 3")
    a(f"s_add_u32 s{S_T0}, s{S_T0}, s{S_T3}")
    a(f"s_mul_i32 s{S_T3}, s{S_B}, 448")
    a(f"s_add_u32 s{S_T0}, s{S_T0}, s{S_T3}")
    a(f"s_lshl_b32 s{S_T0}, s{S_T0}, 1")
    a("s_mov_b64 exec, 0xffff")
    a(f"buffer_load_ushort v20, v9, s[{SRD_C}:{SRD_C+3}], s{S_T0} offen")
    g.poll([f"buffer_load_dwordx2 v[16:17], v9, s[{SRD_WS}:{SRD_WS+3}], s{S_T1} offen sc1",
            f"buffer_load_dwordx2 v[18:19], v9, s[{SRD_WS}:{SRD_WS+3}], s{S_T2} offen sc1"], [17, 19])
    a("v_lshlrev_b32 v20, 16, v20")
    a("v_lshlrev_b32 v10, 2, v1")
    a(f"ds_write_b32 v10, v20 offset:{L_TC}")
    a(f"ds_write_b32 v10, v16 offset:{L_TC+64}")
    a(f"ds_write_b32 v10, v18 offset:{L_TC+128}")
    a("s_mov_b64 exec, -1")
    a.label("L_tp_nor1")
    a(f"s_and_b32 s{S_T5}, s2, 63")
    a(f"s_cmp_ge_u32 s{S_T5}, 56")
    a("s_cbranch_scc1 L_tp_nocb")
    a(f"s_cmp_ge_u32 s{S_HW}, 2")
    a("s_cbranch_scc1 L_tp_nocb")
    a(f"s_lshr_b32 s{S_T1}, s2, 6")
    a(f"s_lshl_b32 s{S_T1}, s{S_T1}, 1")
    a(f"s_add_u32 s{S_T1}, s{S_T1}, s{S_HW}")
    a(f"s_mul_i32 s{S_T1}, s{S_T1}, {6*3584}")
    a(f"s_add_u32 s{S_T1}, s{S_T1}, {W_MOD + 3*3584:#x}")
    a("v_lshrrev_b32 v9, 3, v1")
    a("v_lshlrev_b32 v9, 9, v9")
    a("v_and_b32 v10, 7, v1")
    a("v_lshl_add_u32 v9, v10, 4, v9")
    a(f"s_add_u32 s{S_T2}, s{S_T1}, 3584")
    a("s_mov_b32 exec_lo, -1"); a("s_mov_b32 exec_hi, 0x00ffffff")
    g.poll([f"buffer_load_dwordx4 v[{16+4*c}:{16+4*c+3}], v9, s[{SRD_WS}:{SRD_WS+3}], s{S_T1} offen offset:{c*128} sc1" for c in range(4)] +
           [f"buffer_load_dwordx4 v[{32+4*c}:{32+4*c+3}], v9, s[{SRD_WS}:{SRD_WS+3}], s{S_T2} offen offset:{c*128} sc1" for c in range(4)],
           [17, 19, 21, 23, 25, 27, 29, 31, 33, 35, 37, 39, 41, 43, 45, 47])
    for c in range(4):
        a(f"v_add_f32 v{32+4*c}, 1.0, v{32+4*c}")
        a(f"v_add_f32 v{34+4*c}, 1.0, v{34+4*c}")
        g.rnd2(32+4*c, 34+4*c, 48)
    for e in range(8):
        src_s = 16 + 4*(e % 4) + 2*(e // 4); src_c = 32 + 4*(e % 4) + 2*(e // 4)
        a(f"v_mov_b32 v{48+e}, v{src_c}")
        a(f"v_mov_b32 v{56+e}, v{src_s}")
    a(f"s_mul_i32 s{S_T2}, s{S_HW}, {56*32}")
    a("v_lshlrev_b32 v10, 5, v1")
    a(f"v_add_u32 v10, s{S_T2}, v10")
    a(f"ds_write_b128 v10, v[48:51] offset:{L_CB}")
    a(f"ds_write_b128 v10, v[52:55] offset:{L_CB+16}")
    a(f"ds_write_b128 v10, v[56:59] offset:{L_SB}")
    a(f"ds_write_b128 v10, v[60:63] offset:{L_SB+16}")
    a("s_mov_b64 exec, -1")
    a("s_waitcnt lgkmcnt(0)")
    a.label("L_tp_nocb")
    g.srd(SRD_A, S_WO, 4096*896)
    g.srd(SRD_C, S_DOWN, 1792*896)
    a(f"s_and_b32 s{S_T0}, s{S_HW}, 1")
    a(f"s_cmp_eq_u32 s{S_T0}, 0")
    a(f"s_cselect_b32 s{SRD_B}, s{S_GATE}, s{S_UP}")
    a(f"s_cselect_b32 s{SRD_B+1}, s{S_GATE+1}, s{S_UP+1}")
    a(f"s_mov_b32 s{SRD_B+2}, {448*3584:#x}")
    a(f"s_mov_b32 s{SRD_B+3}, 0x00020000")
    a(f"s_mul_i32 s{SB_DOWN}, s{S_T4}, {32*896}")
    a(f"s_lshl_b32 s{S_T1}, s{S_HW}, 7")
    a(f"s_add_u32 s{SB_DOWN}, s{SB_DOWN}, s{S_T1}")
    a(f"s_lshr_b32 s{SB_GU}, s{S_HW}, 1")
    a(f"s_mul_i32 s{SB_GU}, s{SB_GU}, {7*32*3584}")
    a(f"s_lshl_b32 s{S_T1}, s{S_T4}, 6")
    a(f"s_add_u32 s{SB_GU}, s{SB_GU}, s{S_T1}")
    a(f"s_mul_i32 s{SB_WOO}, s{S_HD}, {256*896}")
    a(f"s_lshl_b32 s{S_T1}, s{S_HW}, 7")
    a(f"s_add_u32 s{SB_WOO}, s{SB_WOO}, s{S_T1}")
    a(f"s_add_u32 s{SB_WOS}, s{SB_WOO}, 512")
    a("v_lshlrev_b32 v9, 4, v1")
    a(f"s_lshl_b32 s{S_T1}, s{S_HW}, 12")
    a(f"s_add_u32 s{S_T1}, s{S_T1}, {L_DOWN}")
    a(f"v_add_u32 v10, s{S_T1}, v9")
    a(f"s_lshl_b32 s{S_T1}, s{S_HW}, 15")
    a(f"s_add_u32 s{S_T1}, s{S_T1}, {L_WO}")
    a(f"v_add_u32 v9, s{S_T1}, v9")
    nraw = depth + 1
    RAWB = [16 + 16*k for k in range(nraw)]
    assert 16 + 16*nraw <= 64
    TMP = 64 - 0
    pipe = Pipe(g, depth)
    cnt = [0]
    def mk4(sbase, off, srd, finish):
        rb = RAWB[cnt[0] % nraw]; cnt[0] += 1
        def issue():
            a(f"s_add_u32 s{S_T1}, s{sbase}, {off}")
            g.loads4(rb, 2, srd, S_T1, 896, wf)
        pipe.add(issue, 8, lambda: finish(rb))
    def mk2(off, i):
        rb = RAWB[cnt[0] % nraw]; cnt[0] += 1
        def issue():
            a(f"s_add_u32 s{S_T1}, s{SB_GU}, {off}")
            g.loads2(rb, 8, SRD_B, S_T1, 3584, wf)
        pipe.add(issue, 8, lambda: g.build2(rb, 72 + 8*i))
    FT = 240
    def fin_lds(vaddr, ldsoff, skip3):
        def f(rb):
            g.build4(rb, FT)
            L = None
            if skip3:
                L = a.newlabel("L_sk")
                a(f"s_cmp_eq_u32 s{S_HW}, 3")
                a(f"s_cbranch_scc1 {L}")
            for c in range(4):
                a(f"ds_write_b128 v{vaddr}, v[{FT+4*c}:{FT+4*c+3}] offset:{ldsoff + c*1024}")
            if L: a.label(L)
            a("s_waitcnt lgkmcnt(0)")
        return f
    for s in range(8):
        mk4(SB_WOS, 32*s*896, SRD_A, fin_lds(9, s*4096, True))
    mk4(SB_DOWN, 0, SRD_C, fin_lds(10, 0, False))
    mk4(SB_DOWN, 512, SRD_C, fin_lds(10, 16384, True))
    for i in range(7):
        mk2(i*32*3584, i)
    for s in range(8):
        mk4(SB_WOO, 32*s*896, SRD_A, (lambda s: (lambda rb: g.build4(rb, 128 + 16*s)))(s))
    pipe.run()
    g.lds_arrive(C_WO, 11, 12)
```

```python
import struct
NAME = "adaLN_cond__mha_block_cached__geglu_ffn__decode_kernel"

W_EPOCH = 0
W_MOD = 0x1000
W_Y = 0x30000
W_ML = 0x110000
W_X1 = 0x112000
W_F = 0x120000
W_H = 0x2B0000
W_Q = 0x2C0000
W_STAMP = 0x400000
W_DUMP = 0x500000
WS_SIZE = 0x1000000
L_CNT = 0
C_Q, C_S, C_A, C_H, C_WO = 0, 4, 8, 12, 16
L_ML = 64
L_Q = 128
L_H = 640
L_TC = 1536
L_CB = 1792
L_SB = L_CB + 3584
L_OROW = 8960
OROW_STRIDE = 528
L_H2 = 13184
H2_STRIDE = 912
L_GU = 15008
L_ACT = 16032
L_ST = 16544
L_S = 16640
L_PA = 23808
L_DOWN = 32768
L_WO = 61440
LDS_SIZE = 159744

S_X, S_K, S_V, S_WQ, S_WO, S_GATE, S_UP = 4, 6, 8, 10, 12, 16, 18
S_DOWN, S_C, S_WMOD, S_OUT, S_DBG, S_WS = 20, 22, 24, 26, 28, 30
S_T = 32
S_B = 33
S_HD = 34
S_HW = 35
SRD_WS = 36
SRD_A = 40
SRD_B = 44
SRD_C = 48
S_M4 = 52
S_T0, S_T1, S_T2, S_T3, S_T4, S_T5 = 54, 55, 56, 57, 58, 59
S_EX = 60
S_SELLO, S_SELHI = 62, 63
S_STAMP = 64
S_SPIN = 96
S_C16 = 97
S_OFFA, S_OFFB, S_CNT, S_FIRST = 98, 99, 100, 101

SPIN_LIMIT = 1 << 20

def f2u(x):
    import struct
    return struct.unpack("<I", struct.pack("<f", x))[0]
```

```python
import sys
from asmlib import Asm

from gen_consts import *

class Gen:
    def __init__(self, stamps=False, dump=False, opts=None):
        self.a = Asm()
        self.stamps = stamps
        self.dump = dump
        self.nst = {}
        self.opts = opts or {}

    def srd(self, d, p, size):
        a = self.a
        a(f"s_mov_b32 s{d}, s{p}")
        a(f"s_mov_b32 s{d+1}, s{p+1}")
        a(f"s_mov_b32 s{d+2}, {size:#x}")
        a(f"s_mov_b32 s{d+3}, 0x00020000")

    def stamp(self, idx):
        if self.stamps:
            assert idx < 16
            self.a(f"s_memrealtime s[{S_STAMP+2*idx}:{S_STAMP+2*idx+1}]")

    def write_stamps(self):
        if not self.stamps: return
        a = self.a
        a("s_waitcnt lgkmcnt(0)")
        a("s_mov_b64 exec, -1")
        a("v_mov_b32 v250, 0")
        for k in range(16):
            a(f"v_writelane_b32 v250, s{S_STAMP+2*k}, {k}")
        a("v_and_b32 v251, 63, v0")
        a("v_lshlrev_b32 v251, 2, v251")
        a(f"s_lshl_b32 s{S_T0}, s2, 3")
        a(f"s_add_u32 s{S_T0}, s{S_T0}, s3")
        a(f"s_lshl_b32 s{S_T0}, s{S_T0}, 6")
        a(f"s_add_u32 s{S_T0}, s{S_T0}, {W_STAMP:#x}")
        a("s_mov_b64 exec, 0xffff")
        a(f"buffer_store_dword v250, v251, s[{SRD_WS}:{SRD_WS+3}], s{S_T0} offen")
        a("s_mov_b64 exec, -1")

    def rnd(self, x, t):
        self.a(f"v_cvt_pk_bf16_f32 v{t}, v{x}, v{x}")
        self.a(f"v_lshlrev_b32 v{x}, 16, v{t}")
    def rnd2(self, x, y, t):
        self.a(f"v_cvt_pk_bf16_f32 v{t}, v{x}, v{y}")
        self.a(f"v_lshlrev_b32 v{x}, 16, v{t}")
        self.a(f"v_and_b32 v{y}, 0xffff0000, v{t}")

    def allreduce64(self, x, t, op="v_add_f32"):
        a = self.a
        for n in (8, 4, 2, 1):
            a(f"{op}_dpp v{x}, v{x}, v{x} row_ror:{n} row_mask:0xf bank_mask:0xf")
        a(f"v_mov_b32 v{t}, v{x}")
        a(f"v_permlane16_swap_b32 v{x}, v{t}")
        a(f"{op} v{x}, v{x}, v{t}")
        a(f"v_mov_b32 v{t}, v{x}")
        a(f"v_permlane32_swap_b32 v{x}, v{t}")
        a(f"{op} v{x}, v{x}, v{t}")

    def treduce8(self, z):
        a = self.a
        for r in range(4):
            a(f"v_permlane16_swap_b32 v{z[2*r]}, v{z[2*r+1]}")
        for r in range(4):
            a(f"v_add_f32 v{z[2*r]}, v{z[2*r]}, v{z[2*r+1]}")
        a(f"v_add_f32_dpp v{z[1]}, v{z[0]}, v{z[0]} row_mirror row_mask:0xf bank_mask:0x3")
        a(f"v_add_f32_dpp v{z[3]}, v{z[4]}, v{z[4]} row_mirror row_mask:0xf bank_mask:0x3")
        a(f"v_add_f32_dpp v{z[1]}, v{z[2]}, v{z[2]} row_mirror row_mask:0xf bank_mask:0xc")
        a(f"v_add_f32_dpp v{z[3]}, v{z[6]}, v{z[6]} row_mirror row_mask:0xf bank_mask:0xc")
        a(f"v_add_f32_dpp v{z[5]}, v{z[1]}, v{z[1]} row_half_mirror row_mask:0xf bank_mask:0x5")
        a(f"v_add_f32_dpp v{z[5]}, v{z[3]}, v{z[3]} row_half_mirror row_mask:0xf bank_mask:0xa")
        a(f"v_add_f32_dpp v{z[5]}, v{z[5]}, v{z[5]} quad_perm:[1,0,3,2] row_mask:0xf bank_mask:0xf")
        a(f"v_add_f32_dpp v{z[5]}, v{z[5]}, v{z[5]} quad_perm:[2,3,0,1] row_mask:0xf bank_mask:0xf")

    def lds_arrive(self, cnt_off, vt0, vt1):
        a = self.a
        a("s_waitcnt lgkmcnt(0)")
        a(f"v_mov_b32 v{vt0}, {L_CNT+cnt_off}")
        a(f"v_mov_b32 v{vt1}, 1")
        a("s_mov_b64 exec, 1")
        a(f"ds_add_u32 v{vt0}, v{vt1}")
        a("s_mov_b64 exec, -1")

    def lds_wait(self, cnt_off, target, vt0, vt1, sleep=1):
        a = self.a
        L = a.newlabel("Lw"); Ld = a.newlabel("Lwd")
        a(f"v_mov_b32 v{vt0}, {L_CNT+cnt_off}")
        a(f"s_mov_b32 s{S_SPIN}, 0")
        a.label(L)
        a(f"ds_read_b32 v{vt1}, v{vt0}")
        a("s_waitcnt lgkmcnt(0)")
        a(f"v_readfirstlane_b32 s{S_T0}, v{vt1}")
        a(f"s_cmp_ge_u32 s{S_T0}, {target}")
        a(f"s_cbranch_scc1 {Ld}")
        a(f"s_add_u32 s{S_SPIN}, s{S_SPIN}, 1")
        a(f"s_cmp_ge_u32 s{S_SPIN}, {SPIN_LIMIT:#x}")
        a(f"s_cbranch_scc1 {Ld}")
        if sleep: a(f"s_sleep {sleep}")
        a(f"s_branch {L}")
        a.label(Ld)

    def poll(self, loads, tagregs, mask=None, sleep=1):
        a = self.a
        L = a.newlabel("Lp"); Ld = a.newlabel("Lpd")
        a(f"s_mov_b32 s{S_SPIN}, 0")
        a.label(L)
        for ld in loads: a(ld)
        a("s_waitcnt vmcnt(0)")
        t0 = tagregs[0]
        a(f"v_xor_b32 v{t0}, s{S_T}, v{t0}")
        for t in tagregs[1:]:
            a(f"v_xor_b32 v{t}, s{S_T}, v{t}")
            a(f"v_or_b32 v{t0}, v{t0}, v{t}")
        a(f"v_cmp_ne_u32 vcc, 0, v{t0}")
        a(f"s_cmp_eq_u64 vcc, 0")
        a(f"s_cbranch_scc1 {Ld}")
        a(f"s_add_u32 s{S_SPIN}, s{S_SPIN}, 1")
        a(f"s_cmp_ge_u32 s{S_SPIN}, {SPIN_LIMIT:#x}")
        a(f"s_cbranch_scc1 {Ld}")
        if sleep: a(f"s_sleep {sleep}")
        a(f"s_branch {L}")
        a.label(Ld)

    def build4(self, raw, frag):
        a = self.a
        for c in range(4):
            sel = S_SELLO if c % 2 == 0 else S_SELHI
            o = c // 2
            for d in range(4):
                a(f"v_perm_b32 v{frag+4*c+d}, v{raw+2*(2*d+1)+o}, v{raw+2*(2*d)+o}, s{sel}")
    def build2(self, raw, frag):
        a = self.a
        for c in range(2):
            sel = S_SELLO if c == 0 else S_SELHI
            for d in range(4):
                a(f"v_perm_b32 v{frag+4*c+d}, v{raw+2*d+1}, v{raw+2*d}, s{sel}")
    def loads4(self, raw, voff, srd, soff, rs, flags=""):
        a = self.a
        for e in range(8):
            a(f"buffer_load_dwordx2 v[{raw+2*e}:{raw+2*e+1}], v{voff}, s[{srd}:{srd+3}], s{soff} offen {flags}")
            a(f"s_add_u32 s{soff}, s{soff}, {rs}")
    def loads2(self, raw, voff, srd, soff, rs, flags=""):
        a = self.a
        for e in range(8):
            a(f"buffer_load_dword v{raw+e}, v{voff}, s[{srd}:{srd+3}], s{soff} offen {flags}")
            a(f"s_add_u32 s{soff}, s{soff}, {rs}")

    def layernorm(self, x, t, out_rounded=True):
        a = self.a
        s, u, mb, ri = t[0], t[1], t[4], t[5]
        a(f"v_add_f32 v{s}, v{x}, v{x+1}")
        for e in range(2, 8): a(f"v_add_f32 v{s}, v{s}, v{x+e}")
        self.allreduce64(s, u)
        a(f"v_mul_f32 v{s}, {f2u(1.0/448):#x}, v{s}")
        q = t[2]; d = t[3]
        a(f"v_sub_f32 v{d}, v{x}, v{s}")
        a(f"v_mul_f32 v{q}, v{d}, v{d}")
        for e in range(1, 8):
            a(f"v_sub_f32 v{d}, v{x+e}, v{s}")
            a(f"v_fmac_f32 v{q}, v{d}, v{d}")
        a(f"s_mov_b32 s{S_EX}, -1")
        a(f"s_mov_b32 s{S_EX+1}, 0x00ffffff")
        a(f"v_cndmask_b32 v{q}, 0, v{q}, s[{S_EX}:{S_EX+1}]")
        self.allreduce64(q, u)
        a(f"v_mul_f32 v{q}, {f2u(1.0/448):#x}, v{q}")
        a(f"v_mov_b32 v{mb}, v{s}")
        self.rnd2(mb, q, u)
        a(f"v_add_f32 v{q}, {f2u(1e-5):#x}, v{q}")
        self.rnd(q, u)
        a(f"v_sqrt_f32 v{q}, v{q}")
        self.rnd(q, u)
        a(f"v_rcp_f32 v{ri}, v{q}")
        return mb, ri

    def macro(self, K, V, reissue, waits):
        a = self.a
        Q = 4; ACC = 8; LS = 16; M = 17; AL = 18; TM = 19; S = 20; PLO = 28; PHI = 36; T = 44
        for j in range(8):
            if waits[j] is not None: a(f"s_waitcnt vmcnt({waits[j]})")
            a(f"v_dot2_f32_bf16 v{S+j}, v{K[j]}, v{Q}, 0")
            for d in range(1, 4):
                a(f"v_dot2_f32_bf16 v{S+j}, v{K[j]+d}, v{Q+d}, v{S+j}")
            if reissue:
                so = S_OFFA if j < 4 else S_OFFB
                a(f"buffer_load_dwordx4 v[{K[j]}:{K[j]+3}], v2, s[{SRD_A}:{SRD_A+3}], s{so} offen offset:{(j%4)*1024} nt")
        for r in range(4):
            a(f"v_permlane16_swap_b32 v{S+2*r}, v{S+2*r+1}")
        for r in range(4):
            a(f"v_add_f32 v{S+2*r}, v{S+2*r}, v{S+2*r+1}")
        for n in (8, 4, 2, 1):
            for r in range(4):
                a(f"v_add_f32_dpp v{S+2*r}, v{S+2*r}, v{S+2*r} row_ror:{n} row_mask:0xf bank_mask:0xf")
        U = [S, S+2, S+4, S+6]
        self.rnd2(U[0], U[1], T)
        self.rnd2(U[2], U[3], T+1)
        a(f"v_max3_f32 v{TM}, v{U[0]}, v{U[1]}, v{U[2]}")
        a(f"v_max_f32 v{TM}, v{TM}, v{U[3]}")
        a(f"v_mov_b32 v{T}, v{TM}")
        a(f"v_permlane16_swap_b32 v{TM}, v{T}")
        a(f"v_max_f32 v{TM}, v{TM}, v{T}")
        a(f"v_mov_b32 v{T}, v{TM}")
        a(f"v_permlane32_swap_b32 v{TM}, v{T}")
        a(f"v_max_f32 v{TM}, v{TM}, v{T}")
        a(f"v_mul_f32 v{TM}, s{S_C16}, v{TM}")
        a(f"v_max_f32 v{TM}, v{TM}, v{M}")
        a(f"v_sub_f32 v{AL}, v{M}, v{TM}")
        a(f"v_mov_b32 v{M}, v{TM}")
        a(f"v_exp_f32 v{AL}, v{AL}")
        for r in range(4):
            a(f"v_fma_f32 v{U[r]}, v{U[r]}, s{S_C16}, -v{M}")
        for r in range(4):
            a(f"v_exp_f32 v{U[r]}, v{U[r]}")
        a(f"v_add_f32 v{T}, v{U[0]}, v{U[1]}")
        a(f"v_add_f32 v{T+1}, v{U[2]}, v{U[3]}")
        a(f"v_add_f32 v{T}, v{T}, v{T+1}")
        a(f"v_fma_f32 v{LS}, v{LS}, v{AL}, v{T}")
        for e in range(8):
            a(f"v_mul_f32 v{ACC+e}, v{ACC+e}, v{AL}")
        for r in range(4):
            a(f"v_cvt_pk_bf16_f32 v{PLO+2*r}, v{U[r]}, 0")
        for r in range(4):
            a(f"v_mov_b32 v{PLO+2*r+1}, v{PLO+2*r}")
        for r in range(4):
            a(f"v_permlane16_swap_b32 v{PLO+2*r}, v{PLO+2*r+1}")
        for j in range(8):
            a(f"v_lshlrev_b32 v{PHI+j}, 16, v{PLO+j}")
        for j in range(8):
            if waits[8+j] is not None: a(f"s_waitcnt vmcnt({waits[8+j]})")
            for d in range(4):
                a(f"v_dot2c_f32_bf16 v{ACC+2*d}, v{V[j]+d}, v{PLO+j}")
                a(f"v_dot2c_f32_bf16 v{ACC+2*d+1}, v{V[j]+d}, v{PHI+j}")
            if reissue:
                so = S_OFFA if j < 4 else S_OFFB
                a(f"buffer_load_dwordx4 v[{V[j]}:{V[j]+3}], v2, s[{SRD_B}:{SRD_B+3}], s{so} offen offset:{(j%4)*1024} nt")

    def dumpv(self, vreg, slot, vt, nl=64):
        if not self.dump: return
        a = self.a
        a(f"v_and_b32 v{vt}, 63, v0")
        a(f"v_lshlrev_b32 v{vt}, 2, v{vt}")
        a(f"s_lshl_b32 s{S_T5}, s2, 3")
        a(f"s_add_u32 s{S_T5}, s{S_T5}, s3")
        a(f"s_lshl_b32 s{S_T5}, s{S_T5}, 4")
        a(f"s_add_u32 s{S_T5}, s{S_T5}, {slot}")
        a(f"s_lshl_b32 s{S_T5}, s{S_T5}, 8")
        a(f"s_add_u32 s{S_T5}, s{S_T5}, {W_DUMP:#x}")
        a(f"buffer_store_dword v{vreg}, v{vt}, s[{SRD_WS}:{SRD_WS+3}], s{S_T5} offen")

from gen_body import body

def generate(stamps=False, dump=False, opts=None):
    g = Gen(stamps, dump, opts)
    body(g)
    lines = g.a.finalize()
    hdr = open("adaLN_cond__mha_block_cached__geglu_ffn__decode.s.ref").read().split("; Override launch")[0]
    out = [hdr.rstrip("\n")]
    out.append(f"; @launch grid=(256,1,1) block=(512,1,1) lds={LDS_SIZE}")
    out.append('.amdgcn_target "amdgcn-amd-amdhsa--gfx950"')
    out.append(".text")
    out.append(f".globl {NAME}")
    out.append(".p2align 8")
    out.append(f".type {NAME},@function")
    out.append(f"{NAME}:")
    for l in lines:
        out.append(l if l.endswith(":") else "    " + l)
    out.append('.section .rodata,"a"')
    out.append(".p2align 6")
    out.append(f".amdhsa_kernel {NAME}")
    out.append("  .amdhsa_next_free_vgpr 256")
    out.append("  .amdhsa_next_free_sgpr 102")
    out.append("  .amdhsa_accum_offset 256")
    out.append("  .amdhsa_group_segment_fixed_size 0")
    out.append("  .amdhsa_kernarg_size 112")
    out.append("  .amdhsa_user_sgpr_count 2")
    out.append("  .amdhsa_user_sgpr_kernarg_segment_ptr 1")
    out.append("  .amdhsa_system_sgpr_workgroup_id_x 1")
    out.append("  .amdhsa_float_denorm_mode_32 3")
    out.append(".end_amdhsa_kernel")
    return "\n".join(out) + "\n"

if __name__ == "__main__":
    import argparse
    p = argparse.ArgumentParser()
    p.add_argument("-o", default="adaLN_cond__mha_block_cached__geglu_ffn__decode.s")
    p.add_argument("--stamps", action="store_true")
    p.add_argument("--dump", action="store_true")
    p.add_argument("--opt", action="append", default=[])
    args = p.parse_args()
    opts = dict(o.split("=") for o in args.opt)
    s = generate(args.stamps, args.dump, opts)
    open(args.o, "w").write(s)
    print("wrote", args.o, len(s), "bytes")
```
